```python
import torch

def _softmax(x, axis=-1):
    return torch.softmax(x, dim=axis)
def _gelu(x):
    return torch.nn.functional.gelu(x, approximate="tanh")
def _silu(x):
    return torch.nn.functional.silu(x)
def _sigmoid(x):
    return torch.sigmoid(x)
def _layernorm(x, axis=-1, eps=1e-5):
    m = x.mean(dim=axis, keepdim=True)
    v = x.var(dim=axis, keepdim=True, unbiased=False)
    return (x - m) / torch.sqrt(v + eps)
def _scatter_add(tgt, idx, src, axis=0):
    return tgt.clone().index_add_(axis, idx, src)
def _segment_sum(src, seg, n):
    out = torch.zeros((n,) + src.shape[1:], dtype=src.dtype)
    return out.index_add_(0, seg, src)
def _pad(x, pw):
    flat = tuple(v for pair in reversed(pw) for v in pair)
    return torch.nn.functional.pad(x, flat)

kernel_name = 'standalone__molecular_angular_gemnet__graph'

def setup_inputs():

    _w = (lambda a: (lambda t: t.to(torch.bfloat16) if t.is_floating_point() else t)(torch.as_tensor(a)))
    N, deg, De, L = 25000, 32, 4, 2
    E = N * deg
    T = E * deg
    NR = 8
    dist = torch.rand(E).to(float)
    angle = (torch.rand(T) * torch.pi).to(float)
    centers = torch.linspace(0.0, 1.0, NR).to(float)
    ang_freq = torch.arange(1, L + 1).to(float)
    return {
        "m": _w((lambda *s: torch.randn(*s, dtype=torch.bfloat16) * 0.05)(E, De)),
        "idx_in": _w((lambda lo, hi, *s: torch.randint(lo, hi, s))(0, E, T).to(torch.int64)),
        "idx_out": _w((lambda lo, hi, *s: torch.randint(lo, hi, s))(0, E, T).to(torch.int64)),
        "dist": _w(dist),
        "angle": _w(angle),
        "centers": _w(centers),
        "ang_freq": _w(ang_freq),
        "w_rbf": _w((lambda *s: torch.randn(*s, dtype=torch.bfloat16) * 0.2)(NR, De)),
        "w_sbf": _w((lambda *s: torch.randn(*s, dtype=torch.bfloat16) * 0.2)(NR * L, De)),
        "w_down": _w((lambda *s: torch.randn(*s, dtype=torch.bfloat16) * 0.2)(De, De)),
        "w_up": _w((lambda *s: torch.randn(*s, dtype=torch.bfloat16) * 0.2)(De, De)),
    }

def reference(m, idx_in, idx_out, dist, angle, centers, ang_freq, w_rbf, w_sbf, w_down, w_up):
    E, De = m.shape[0], m.shape[1]
    NR = centers.shape[0]
    L = ang_freq.shape[0]
    rbf = torch.exp(-10.0 * (dist[:, None] - centers[None, :]) ** 2)
    cbf = torch.cos(ang_freq[None, :] * angle[:, None])
    rbf_t = rbf[idx_out]
    sbf = torch.reshape(rbf_t[:, :, None] * cbf[:, None, :], (-1, NR * L))
    x = (m[idx_in] @ w_down) * (sbf @ w_sbf)
    agg = _segment_sum(x, idx_out, E)
    return m + (agg @ w_up) * (rbf @ w_rbf)
```

```python
import sys

E = 800000
T = 25600000
NB = 256
BE = 3125
CH = 25600
NCH = 1000
REC_STRIDE = 153600
WORD_OFF = 51200
OFFS_OFF = NCH * REC_STRIDE
OFFS_STRIDE = 1040
OFFS_END = OFFS_OFF + NCH * OFFS_STRIDE
MD_OFF = (OFFS_END + 4095) // 4096 * 4096
MAGIC_B = (2**32 + BE - 1) // BE
MAGIC_H = 10737
assert (E - 1) * MAGIC_H >> 32 == 1
for x in (0, 3124, 3125, 6249, 6250, 799999, 796874, 796875):
    assert (x * MAGIC_B) >> 32 == x // BE

class A:
    def __init__(s): s.l = []
    def __call__(s, t):
        for x in t.strip().split("\n"): s.l.append("  " + x.strip())
    def lab(s, n): s.l.append(n + ":")
    def text(s): return "\n".join(s.l)

def vr(b, n): return f"v[{b}:{b+n-1}]"
def sr(b, n): return f"s[{b}:{b+n-1}]"

def srd(a, dst, plo, nbytes, stride=0):
    a(f"s_mov_b32 s{dst}, s{plo}")
    a(f"s_and_b32 s{dst+1}, s{plo+1}, 0xffff")
    if stride: a(f"s_or_b32 s{dst+1}, s{dst+1}, {stride << 16}")
    a(f"s_mov_b32 s{dst+2}, {nbytes}")
    a(f"s_mov_b32 s{dst+3}, 0x00020000")

K1_CNT = 153600
K1_LDS = K1_CNT + 4096

def gen_prod(opt):
    a = A()
    NT = opt.get("k1_ld", " nt")
    ST = opt.get("k1_st", "")
    S_IN, S_OUT, S_ANG, S_WS, S_M, S_MD = 16, 20, 24, 28, 32, 36
    sC, sN, sT, sWAVE, sB4, sB2, sRB = 64, 65, 66, 67, 68, 69, 70
    sMAGB, sNEG, sMAGH, sCNT = 71, 72, 73, 74
    vT16, vFOUR, vA = 1, 2, 3
    SET = {"A": dict(o=4, i=28, ot=112, it=113), "B": dict(o=52, i=76, ot=114, it=115)}
    ANG, ANGT = 100, 116
    TMP = list(range(117, 128))
    def oreg(S, r): return S["o"] + r if r < 24 else S["ot"]
    def ireg(S, r): return S["i"] + r if r < 24 else S["it"]

    def load_idx(S, sChunk):
        a(f"s_mul_i32 s{sB4}, s{sChunk}, {CH*4}")
        a(f"v_lshrrev_b32 v{TMP[0]}, 2, v{vT16}")
        for (srdr, key, tkey) in ((S_OUT, "o", "ot"), (S_IN, "i", "it")):
            for j in range(6):
                a(f"s_add_u32 s{sT}, s{sB4}, {j*16384}")
                a(f"buffer_load_dwordx4 {vr(S[key]+4*j,4)}, v{vT16}, {sr(srdr,4)}, s{sT} offen{NT}")
            a(f"s_add_u32 s{sT}, s{sB4}, {98304}")
            a(f"buffer_load_dword v{S[tkey]}, v{TMP[0]}, {sr(srdr,4)}, s{sT} offen{NT}")
    def load_ang(sChunk):
        a(f"s_mul_i32 s{sB2}, s{sChunk}, {CH*2}")
        a(f"v_lshrrev_b32 v{TMP[0]}, 1, v{vT16}")
        a(f"v_lshrrev_b32 v{TMP[1]}, 3, v{vT16}")
        for j in range(6):
            a(f"s_add_u32 s{sT}, s{sB2}, {j*8192}")
            a(f"buffer_load_dwordx2 {vr(ANG+2*j,2)}, v{TMP[0]}, {sr(S_ANG,4)}, s{sT} offen{NT}")
        a(f"s_add_u32 s{sT}, s{sB2}, {49152}")
        a(f"buffer_load_ushort v{ANGT}, v{TMP[1]}, {sr(S_ANG,4)}, s{sT} offen{NT}")

    a.lab("prod_kernel")
    a("s_cmp_ge_u32 s2, 256")
    a("s_cbranch_scc1 Lp_end")
    a("s_load_dwordx4 s[4:7], s[0:1], 0")
    a("s_load_dwordx2 s[8:9], s[0:1], 16")
    a("s_load_dwordx2 s[10:11], s[0:1], 32")
    a("s_load_dwordx2 s[12:13], s[0:1], 72")
    a("s_load_dwordx2 s[14:15], s[0:1], 104")
    a(f"v_lshlrev_b32 v{vT16}, 4, v0")
    a(f"v_mov_b32 v{vFOUR}, 4")
    a(f"v_readfirstlane_b32 s{sWAVE}, v0")
    a(f"s_mov_b32 s{sMAGB}, {MAGIC_B}")
    a(f"s_mov_b32 s{sNEG}, {-BE & 0xffffffff}")
    a(f"s_mov_b32 s{sMAGH}, {MAGIC_H}")
    a(f"s_mov_b32 s{sCNT}, {K1_CNT}")
    a(f"s_lshr_b32 s{sWAVE}, s{sWAVE}, 6")
    a("s_waitcnt lgkmcnt(0)")
    a("s_load_dwordx8 s[40:47], s[12:13], 0")
    srd(a, S_IN, 6, T*4)
    srd(a, S_OUT, 8, T*4)
    srd(a, S_ANG, 10, T*2)
    srd(a, S_WS, 14, OFFS_END)
    srd(a, S_M, 4, E*8)
    a(f"s_add_u32 s14, s14, {MD_OFF}")
    a("s_addc_u32 s15, s15, 0")
    srd(a, S_MD, 14, E*8)
    a(f"s_mov_b32 s{sC}, s2")
    a(f"v_mov_b32 v{TMP[2]}, 0")
    a(f"v_lshlrev_b32 v{TMP[3]}, 2, v0")
    a(f"v_add_u32 v{TMP[3]}, {K1_CNT}, v{TMP[3]}")
    a(f"ds_write_b32 v{TMP[3]}, v{TMP[2]}")
    B = SET["B"]
    a("s_cmp_ge_u32 s2, 196")
    a("s_cbranch_scc1 Lp_nomd")
    a("s_lshl_b32 s3, s2, 15")
    a(f"v_add_u32 v{TMP[4]}, s3, v{vT16}")
    a(f"v_add_u32 v{TMP[5]}, 16384, v{TMP[4]}")
    a(f"buffer_load_dwordx4 {vr(B['o'],4)}, v{TMP[4]}, {sr(S_M,4)}, 0 offen")
    a(f"buffer_load_dwordx4 {vr(B['o']+4,4)}, v{TMP[5]}, {sr(S_M,4)}, 0 offen")
    load_idx(SET["A"], sC)
    load_ang(sC)
    a("s_waitcnt lgkmcnt(0)")
    for k in range(4):
        for h in range(2):
            a(f"s_lshl_b32 s{48+k*4+2*h}, s{40+k*2+h}, 16")
            a(f"s_and_b32 s{48+k*4+2*h+1}, s{40+k*2+h}, 0xffff0000")
    a("s_waitcnt vmcnt(21)")
    for q in range(4):
        r0 = B['o'] + 2*q
        mm = [B['i'] + k for k in range(4)]
        a(f"v_lshlrev_b32 v{mm[0]}, 16, v{r0}")
        a(f"v_and_b32 v{mm[1]}, 0xffff0000, v{r0}")
        a(f"v_lshlrev_b32 v{mm[2]}, 16, v{r0+1}")
        a(f"v_and_b32 v{mm[3]}, 0xffff0000, v{r0+1}")
        acc = [B['i'] + 4 + d for d in range(4)]
        for d in range(4):
            a(f"v_mul_f32 v{acc[d]}, s{48+d}, v{mm[0]}")
        for k in range(1, 4):
            for d in range(4):
                a(f"v_fmac_f32 v{acc[d]}, s{48+k*4+d}, v{mm[k]}")
        o = B['o'] + 8 + 2*q
        a(f"v_cvt_pk_bf16_f32 v{o}, v{acc[0]}, v{acc[1]}")
        a(f"v_cvt_pk_bf16_f32 v{o+1}, v{acc[2]}, v{acc[3]}")
    a(f"buffer_store_dwordx4 {vr(B['o']+8,4)}, v{TMP[4]}, {sr(S_MD,4)}, 0 offen")
    a(f"buffer_store_dwordx4 {vr(B['o']+12,4)}, v{TMP[5]}, {sr(S_MD,4)}, 0 offen")
    a("s_waitcnt vmcnt(2)")
    a("s_branch Lp_start")
    a.lab("Lp_nomd")
    load_idx(SET["A"], sC)
    load_ang(sC)
    a("s_waitcnt vmcnt(0)")
    a.lab("Lp_start")
    a("s_waitcnt lgkmcnt(0)")
    a("s_barrier")

    def body(X, Y, n):
        a.lab(f"Lp_body{n}")
        a(f"s_add_u32 s{sN}, s{sC}, 256")
        a(f"s_cmp_lt_u32 s{sN}, {NCH}")
        a(f"s_cbranch_scc0 Lp_noy{n}")
        load_idx(Y, sN)
        a("s_waitcnt vmcnt(30)")
        a(f"s_branch Lp_aftery{n}")
        a.lab(f"Lp_noy{n}")
        a("s_waitcnt vmcnt(16)")
        a.lab(f"Lp_aftery{n}")
        for r in range(25):
            o, i = oreg(X, r), ireg(X, r)
            tb, te, th = TMP[(3*r) % 9], TMP[(3*r+1) % 9], TMP[(3*r+2) % 9]
            a(f"v_mul_hi_u32_u24 v{tb}, s{sMAGB}, v{o}")
            a(f"v_mul_hi_u32_u24 v{th}, s{sMAGH}, v{i}")
            a(f"v_mad_i32_i24 v{te}, v{tb}, s{sNEG}, v{o}")
            a(f"v_lshl_add_u32 v{tb}, v{tb}, 1, v{th}")
            a(f"v_lshl_or_b32 v{i}, v{te}, 20, v{i}")
            a(f"v_lshl_add_u32 v{o}, v{tb}, 2, s{sCNT}")
            a(f"ds_add_u32 v{o}, v{vFOUR}")
        a("s_waitcnt lgkmcnt(0)")
        a("s_barrier")
        a(f"s_cmp_lg_u32 s{sWAVE}, 0")
        a(f"s_cbranch_scc1 Lp_noscan{n}")
        c = list(range(120, 128)); vS, vE = 117, 118
        a(f"v_lshlrev_b32 v{vA}, 5, v0")
        a(f"v_add_u32 v{vA}, {K1_CNT}, v{vA}")
        a(f"ds_read_b128 {vr(120,4)}, v{vA}")
        a(f"ds_read_b128 {vr(124,4)}, v{vA} offset:16")
        a("v_mov_b32 v118, 0")
        a("v_mov_b32 v119, 0")
        a("s_waitcnt lgkmcnt(0)")
        for q in range(4):
            a(f"ds_write_b64 v{vA}, v[118:119] offset:{8*q}")
        for k in range(1, 8):
            a(f"v_add_u32 v{c[k]}, v{c[k]}, v{c[k-1]}")
        a(f"v_mov_b32 v{vS}, v{c[7]}")
        for dpp in ("row_shr:1 row_mask:0xf", "row_shr:2 row_mask:0xf", "row_shr:4 row_mask:0xf", "row_shr:8 row_mask:0xf",
                    "row_bcast:15 row_mask:0xa", "row_bcast:31 row_mask:0xc"):
            a("s_nop 1")
            a(f"v_add_u32_dpp v{vS}, v{vS}, v{vS} {dpp} bank_mask:0xf")
        a("s_waitcnt lgkmcnt(0)")
        a(f"v_sub_u32 v{vE}, v{vS}, v{c[7]}")
        for k in range(7, 0, -1):
            a(f"v_add_u32 v{c[k]}, v{vE}, v{c[k-1]}")
        a(f"v_mov_b32 v{c[0]}, v{vE}")
        a(f"ds_write_b128 v{vA}, {vr(120,4)} offset:2048")
        a(f"ds_write_b128 v{vA}, {vr(124,4)} offset:2064")
        a("s_waitcnt lgkmcnt(0)")
        for q in range(4):
            a(f"v_lshrrev_b32 v{vS}, 2, v{c[2*q]}")
            a(f"v_lshl_or_b32 v{c[q]}, v{c[2*q+1]}, 14, v{vS}")
        a(f"s_mul_i32 s{sRB}, s{sC}, {OFFS_STRIDE}")
        a(f"s_add_u32 s{sRB}, s{sRB}, {OFFS_OFF}")
        a(f"v_add_u32 v{vS}, s{sRB}, v{vT16}")
        a(f"buffer_store_dwordx4 {vr(120,4)}, v{vS}, {sr(S_WS,4)}, 0 offen")
        a(f"v_mov_b32 v{vE}, {CH | (CH << 16)}")
        a(f"v_add_u32 v{vA}, 1024, v{vS}")
        a("s_mov_b64 exec, 1")
        a(f"buffer_store_dword v{vE}, v{vA}, {sr(S_WS,4)}, 0 offen")
        a("s_mov_b64 exec, -1")
        a.lab(f"Lp_noscan{n}")
        a("s_barrier")
        a(f"s_cmp_lt_u32 s{sN}, {NCH}")
        a(f"s_cbranch_scc0 Lp_noy2{n}")
        a("s_waitcnt vmcnt(23)")
        a(f"s_branch Lp_aftery2{n}")
        a.lab(f"Lp_noy2{n}")
        a("s_waitcnt vmcnt(9)")
        a.lab(f"Lp_aftery2{n}")
        for r in range(25):
            o = oreg(X, r)
            a(f"ds_add_rtn_u32 v{o}, v{o}, v{vFOUR} offset:2048")
        a("s_waitcnt lgkmcnt(0)")
        for r in range(25):
            o, i = oreg(X, r), ireg(X, r)
            t = TMP[r % 8]
            a(f"v_lshrrev_b32 v{t}, 1, v{o}")
            a(f"ds_write_b32 v{o}, v{i} offset:{WORD_OFF}")
            if r == 24:
                a(f"ds_write_b16 v{t}, v{ANGT}")
            elif r % 2 == 0:
                a(f"ds_write_b16 v{t}, v{ANG + r//2}")
            else:
                a(f"ds_write_b16_d16_hi v{t}, v{ANG + r//2}")
        a("s_waitcnt lgkmcnt(0)")
        a("s_barrier")
        a(f"s_cmp_lt_u32 s{sN}, {NCH}")
        a(f"s_cbranch_scc0 Lp_noy3{n}")
        load_ang(sN)
        a.lab(f"Lp_noy3{n}")
        bufs = [X["o"] + 4*q for q in range(6)] + [X["i"] + 4*q for q in range(6)]
        v1, v2 = TMP[2], TMP[3]
        a(f"v_add_u32 v{v1}, 65536, v{vT16}")
        a(f"v_add_u32 v{v2}, 131072, v{vT16}")
        def lds_addr(j):
            base = (vT16, v1, v2)[j // 4]
            return f"v{base} offset:{(j % 4) * 16384}"
        for j in range(9):
            a(f"ds_read_b128 {vr(bufs[j],4)}, {lds_addr(j)}")
        a(f"s_mul_i32 s{sB4}, s{sC}, {REC_STRIDE}")
        for j in range(9):
            a(f"s_add_u32 s{sT}, s{sB4}, {j*16384}")
            a(f"s_waitcnt lgkmcnt({8-j})")
            a(f"buffer_store_dwordx4 {vr(bufs[j],4)}, v{vT16}, {sr(S_WS,4)}, s{sT} offen{ST}")
        a(f"s_cmp_ge_u32 s{sWAVE}, 6")
        a(f"s_cbranch_scc1 Lp_no10{n}")
        a(f"ds_read_b128 {vr(bufs[9],4)}, {lds_addr(9)}")
        a(f"s_add_u32 s{sT}, s{sB4}, {9*16384}")
        a("s_waitcnt lgkmcnt(0)")
        a(f"buffer_store_dwordx4 {vr(bufs[9],4)}, v{vT16}, {sr(S_WS,4)}, s{sT} offen{ST}")
        a.lab(f"Lp_no10{n}")
        a(f"s_mov_b32 s{sC}, s{sN}")
        a(f"s_cmp_lt_u32 s{sC}, {NCH}")
        a("s_cbranch_scc0 Lp_end")
    body(SET["A"], SET["B"], 0)
    body(SET["B"], SET["A"], 1)
    a("s_branch Lp_body0")
    a.lab("Lp_end")
    a("s_endpgm")
    return a.text()

K2_LDS = 150016
ACC0 = 50000

def gen_cons(opt):
    a = A()
    RL = opt.get("k2_ld", "")
    S_WS, S_DIST, S_MD = 4, 8, 8
    vL4, vL2, vD0, vD1, vK1, vK2 = 1, 2, 3, 4, 5, 6
    H = 8
    W = [24, 25, 26, 27]; AN = [28, 29, 30, 31]
    ST = [dict(a8=32, a8b=33, cp=34, md=36, A=40), dict(a8=44, a8b=45, cp=46, md=48, A=52)]
    X = 56
    G = 64
    M = 68
    TT = [72, 73, 74, 75]
    P = 76
    a.lab("cons_kernel")
    a("s_cmp_ge_u32 s2, 256")
    a("s_cbranch_scc1 Lc_end")
    a("s_load_dwordx4 s[12:15], s[0:1], 24")
    a("s_load_dwordx8 s[16:23], s[0:1], 40")
    a("s_load_dwordx2 s[24:25], s[0:1], 104")
    a("v_and_b32 v7, 63, v0")
    a(f"v_lshlrev_b32 v{vL4}, 2, v7")
    a(f"v_lshlrev_b32 v{vL2}, 1, v7")
    a("v_readfirstlane_b32 s3, v0")
    a("s_waitcnt lgkmcnt(0)")
    a("s_lshr_b32 s3, s3, 6")
    a("s_load_dwordx16 s[28:43], s[22:23], 0")
    a("s_load_dwordx16 s[44:59], s[22:23], 64")
    a("s_load_dwordx4 s[92:95], s[16:17], 0")
    a("s_load_dword s100, s[18:19], 0")
    srd(a, S_WS, 24, OFFS_END)
    srd(a, S_DIST, 12, E*2)
    a(f"s_mul_i32 s26, s3, {OFFS_STRIDE}")
    a("s_lshl_b32 s27, s2, 2")
    a("s_add_u32 s26, s26, s27")
    a(f"s_add_u32 s26, s26, {OFFS_OFF}")
    a(f"v_mul_u32_u24 v{P}, {16*OFFS_STRIDE}, v7")
    a(f"v_add_u32 v{P}, s26, v{P}")
    a(f"buffer_load_dwordx2 {vr(P+2,2)}, v{P}, {sr(S_WS,4)}, 0 offen")
    a(f"s_mul_i32 s27, s2, {BE*2}")
    a(f"v_lshlrev_b32 v{P+1}, 1, v0")
    a(f"v_add_u32 v{P+1}, s27, v{P+1}")
    DI = P + 4
    for k in range(4):
        a(f"buffer_load_ushort v{DI+k}, v{P+1}, {sr(S_DIST,4)}, 0 offen offset:{2048*k if k < 2 else 0}" if k < 2 else
          f"buffer_load_ushort v{DI+k}, v{P}, {sr(S_DIST,4)}, 0 offen offset:{2048*(k-2)}")
        if k == 1:
            a(f"v_add_u32 v{P}, 4096, v{P+1}")
    Z = P + 8
    for q in range(4): a(f"v_mov_b32 v{Z+q}, 0")
    a(f"v_lshlrev_b32 v{Z+4}, 4, v0")
    a(f"v_add_u32 v{Z+4}, {ACC0}, v{Z+4}")
    a(f"v_add_u32 v{Z+5}, 65536, v{Z+4}")
    for j in range(6):
        base = Z+4 if j < 4 else Z+5
        a(f"ds_write_b128 v{base}, {vr(Z,4)} offset:{(j % 4)*16384}")
    a(f"v_cmp_gt_u32 vcc, 106, v0")
    a("s_and_saveexec_b64 s[26:27], vcc")
    a("s_cbranch_execz Lc_z")
    a(f"ds_write_b128 v{Z+5}, {vr(Z,4)} offset:{2*16384}")
    a.lab("Lc_z")
    a("s_mov_b64 exec, s[26:27]")
    for q in range(4): a(f"v_mov_b32 v{AN[q]}, 0")
    a("s_waitcnt lgkmcnt(0)")
    def dw(base, row, d): return base + 2*row + d//2
    for l in range(2):
        for d in range(4):
            for rp in range(4):
                op = "s_pack_ll_b32_b16" if d % 2 == 0 else "s_pack_hh_b32_b16"
                a(f"{op} s{60 + (l*4+d)*4 + rp}, s{dw(28, 4*rp+l, d)}, s{dw(28, 4*rp+2+l, d)}")
    a("s_load_dwordx16 s[28:43], s[20:21], 0")
    for r in range(7, -1, -1):
        if r % 2: a(f"s_and_b32 s{92+r}, s{92+r//2}, 0xffff0000")
        else:     a(f"s_lshl_b32 s{92+r}, s{92+r//2}, 16")
    a("s_lshl_b32 s26, s100, 16")
    a("s_and_b32 s27, s100, 0xffff0000")
    a(f"v_mov_b32 v{vK1}, s26")
    a(f"v_mov_b32 v{vK2}, s27")
    a(f"v_mul_f32 v{vK1}, 0.15915494, v{vK1}")
    a(f"v_mul_f32 v{vK2}, 0.15915494, v{vK2}")
    a("s_waitcnt lgkmcnt(0)")
    for d in range(4):
        for rp in range(4):
            op = "s_pack_ll_b32_b16" if d % 2 == 0 else "s_pack_hh_b32_b16"
            a(f"{op} s{12 + d*4 + rp}, s{dw(28, 2*rp, d)}, s{dw(28, 2*rp+1, d)}")
    a(f"s_mov_b32 s28, 0xc166d4ca")
    a("s_waitcnt vmcnt(4)")
    lo, hi = P+2, P+3
    s0, s1, s2 = TT[0], TT[1], TT[2]
    a(f"v_and_b32 v{s0}, 0xffff, v{lo}")
    a(f"v_lshrrev_b32 v{s1}, 16, v{lo}")
    a(f"v_and_b32 v{s2}, 0xffff, v{hi}")
    a(f"v_sub_u32 v{vD0}, v{s1}, v{s0}")
    a(f"v_sub_u32 v{vD1}, v{s2}, v{s1}")
    a(f"v_lshl_or_b32 v{vD0}, v{vD0}, 16, v{s0}")
    a(f"v_lshl_or_b32 v{vD1}, v{vD1}, 16, v{s1}")
    a("s_waitcnt vmcnt(0)")
    RB = P + 16
    RP = P + 24
    AA = P + 28
    for k in range(4):
        if k == 3:
            a("s_cmp_lg_u32 s3, 0")
            a("s_cbranch_scc1 Lc_pro_done")
        a(f"v_lshlrev_b32 v{DI+k}, 16, v{DI+k}")
        for r in range(8):
            a(f"v_subrev_f32 v{RB+r}, s{92+r}, v{DI+k}")
        for r in range(8):
            a(f"v_mul_f32 v{RB+r}, v{RB+r}, v{RB+r}")
        for r in range(8):
            a(f"v_mul_f32 v{RB+r}, s28, v{RB+r}")
        for r in range(8):
            a(f"v_exp_f32 v{RB+r}, v{RB+r}")
        a("s_nop 0")
        for rp in range(4):
            a(f"v_cvt_pk_bf16_f32 v{RP+rp}, v{RB+2*rp}, v{RB+2*rp+1}")
        for j in range(8):
            a(f"v_dot2_f32_bf16 v{AA+j}, v{RP}, s{60+j*4}, 0")
        for d in range(4):
            a(f"v_dot2_f32_bf16 v{H+4*k+d}, v{RP}, s{12+d*4}, 0")
        for rp in range(1, 4):
            for j in range(8):
                a(f"v_dot2_f32_bf16 v{AA+j}, v{RP+rp}, s{60+j*4+rp}, v{AA+j}")
            for d in range(4):
                a(f"v_dot2_f32_bf16 v{H+4*k+d}, v{RP+rp}, s{12+d*4+rp}, v{H+4*k+d}")
        for d in range(4):
            a(f"v_cvt_pk_bf16_f32 v{RB+d}, v{AA+d}, v{AA+4+d}")
        a(f"v_lshlrev_b32 v{RP}, 4, v0")
        if k < 3:
            a(f"ds_write_b128 v{RP}, {vr(RB,4)} offset:{16384*k}")
        else:
            a(f"v_cmp_gt_u32 vcc, {BE-3072}, v0")
            a("s_and_saveexec_b64 s[26:27], vcc")
            a(f"ds_write_b128 v{RP}, {vr(RB,4)} offset:{16384*k}")
            a("s_mov_b64 exec, s[26:27]")
    a.lab("Lc_pro_done")
    a("s_load_dwordx2 s[24:25], s[0:1], 104")
    a("s_waitcnt lgkmcnt(0)")
    a(f"s_add_u32 s24, s24, {MD_OFF}")
    a("s_addc_u32 s25, s25, 0")
    srd(a, S_MD, 24, E, stride=8)
    a("s_barrier")

    MM = [12, 14, 16, 18]; MA = [20, 22, 24, 26]
    sI, sREM, sCB, sOW, sOA, sD, sNN, sPH, sTAIL, sCB0, sT = 28, 29, 30, 31, 32, 33, 34, 35, 36, 37, 38
    a(f"s_mul_i32 s{sCB0}, s3, {REC_STRIDE}")
    a(f"s_mov_b32 s{sCB}, s{sCB0}")
    for s in (sI, sREM, sPH, sTAIL): a(f"s_mov_b32 s{s}, 0")
    uid = [0]
    def Lst(k):
        u = uid[0]; uid[0] += 1
        mm, ma = MM[k], MA[k]
        a(f"s_cmp_lg_u32 s{sREM}, 0")
        a(f"s_cbranch_scc1 Lh{u}")
        a.lab(f"Ln{u}")
        a(f"s_cmp_lt_u32 s{sI}, 63")
        a(f"s_cbranch_scc1 Lr{u}")
        a(f"s_cmp_eq_u32 s{sPH}, 0")
        a(f"s_cbranch_scc0 Lx{u}")
        a(f"s_mov_b32 s{sPH}, 1")
        a(f"s_mov_b32 s{sI}, 0")
        a(f"s_mov_b32 s{sCB}, s{sCB0}")
        a("s_mov_b64 exec, -1")
        a(f"v_mov_b32 v{vD0}, v{vD1}")
        a("s_nop 1")
        a.lab(f"Lr{u}")
        a(f"v_readlane_b32 s{sD}, v{vD0}, s{sI}")
        a(f"s_add_u32 s{sI}, s{sI}, 1")
        a(f"s_add_u32 s{sOW}, s{sCB}, {WORD_OFF}")
        a(f"s_lshr_b32 s{sREM}, s{sD}, 16")
        a(f"s_and_b32 s{sD}, s{sD}, 0xffff")
        a(f"s_lshl_b32 s{sT}, s{sD}, 1")
        a(f"s_add_u32 s{sOA}, s{sCB}, s{sT}")
        a(f"s_lshl_b32 s{sT}, s{sD}, 2")
        a(f"s_add_u32 s{sOW}, s{sOW}, s{sT}")
        a(f"s_add_u32 s{sCB}, s{sCB}, {16*REC_STRIDE}")
        a(f"s_cmp_eq_u32 s{sREM}, 0")
        a(f"s_cbranch_scc1 Ln{u}")
        a.lab(f"Lh{u}")
        a(f"s_min_u32 s{sNN}, s{sREM}, 64")
        a(f"s_sub_u32 s{sREM}, s{sREM}, s{sNN}")
        a(f"s_bfm_b64 {sr(mm,2)}, s{sNN}, 0")
        a(f"s_cmp_eq_u32 s{sNN}, 64")
        a(f"s_cselect_b64 {sr(mm,2)}, -1, {sr(mm,2)}")
        a(f"s_mov_b64 {sr(ma,2)}, {sr(mm,2)}")
        a(f"s_mov_b64 exec, {sr(mm,2)}")
        a(f"buffer_load_dword v{W[k]}, v{vL4}, {sr(S_WS,4)}, s{sOW} offen{RL}")
        a(f"buffer_load_short_d16_hi v{AN[k]}, v{vL2}, {sr(S_WS,4)}, s{sOA} offen{RL}")
        a(f"s_add_u32 s{sOW}, s{sOW}, 256")
        a(f"s_add_u32 s{sOA}, s{sOA}, 128")
        a(f"s_branch Ld{u}")
        a.lab(f"Lx{u}")
        a(f"s_add_u32 s{sTAIL}, s{sTAIL}, 1")
        a(f"s_mov_b64 {sr(mm,2)}, 1")
        a(f"s_mov_b64 {sr(ma,2)}, 0")
        a("s_mov_b64 exec, 1")
        a(f"s_mov_b32 s{sT}, {WORD_OFF}")
        a(f"buffer_load_dword v{W[k]}, v{vL4}, {sr(S_WS,4)}, s{sT} offen{RL}")
        a(f"buffer_load_short_d16_hi v{AN[k]}, v{vL2}, {sr(S_WS,4)}, 0 offen{RL}")
        a.lab(f"Ld{u}")
    def Gst(k, wait):
        st = ST[k % 2]; w = W[k]; an = AN[k]
        a(f"s_waitcnt vmcnt({wait})")
        a(f"s_mov_b64 exec, {sr(MM[k],2)}")
        a(f"v_and_b32 v{TT[0]}, 0xfffff, v{w}")
        a(f"v_lshrrev_b32 v{st['a8']}, 17, v{w}")
        a(f"buffer_load_dwordx2 {vr(st['md'],2)}, v{TT[0]}, {sr(S_MD,4)}, 0 idxen")
        a(f"v_and_b32 v{st['a8']}, 0x7ff8, v{st['a8']}")
        a(f"v_mul_f32 v{TT[1]}, v{vK1}, v{an}")
        a(f"v_add_u32 v{TT[0]}, v{st['a8']}, v{st['a8']}")
        a(f"v_mul_f32 v{TT[2]}, v{vK2}, v{an}")
        a(f"ds_read_b128 {vr(st['A'],4)}, v{TT[0]}")
        a(f"v_fract_f32 v{TT[1]}, v{TT[1]}")
        a(f"v_fract_f32 v{TT[2]}, v{TT[2]}")
        a(f"v_cos_f32 v{TT[1]}, v{TT[1]}")
        a(f"v_cos_f32 v{TT[2]}, v{TT[2]}")
        a(f"v_add_u32 v{st['a8b']}, {ACC0 + 25000}, v{st['a8']}")
        a(f"v_cvt_pk_bf16_f32 v{st['cp']}, v{TT[1]}, v{TT[2]}")
    def Cst(k):
        st = ST[k % 2]
        a("s_waitcnt vmcnt(5) lgkmcnt(5)")
        a(f"s_mov_b64 exec, {sr(MA[k],2)}")
        md = st['md']
        for d in range(4):
            a(f"v_dot2_f32_bf16 v{G+d}, v{st['A']+d}, v{st['cp']}, 0")
        a(f"v_lshlrev_b32 v{M}, 16, v{md}")
        a(f"v_and_b32 v{M+1}, 0xffff0000, v{md}")
        a(f"v_lshlrev_b32 v{M+2}, 16, v{md+1}")
        a(f"v_and_b32 v{M+3}, 0xffff0000, v{md+1}")
        for d in range(4):
            a(f"v_mul_f32 v{G+d}, v{M+d}, v{G+d}")
        for d in range(4):
            a(f"v_cvt_f64_f32 {vr(X+2*d,2)}, v{G+d}")
        a(f"ds_add_f64 v{st['a8']}, {vr(X,2)} offset:{ACC0}")
        a(f"ds_add_f64 v{st['a8b']}, {vr(X+2,2)}")
        a(f"ds_add_f64 v{st['a8b']}, {vr(X+4,2)} offset:25000")
        a(f"ds_add_f64 v{st['a8b']}, {vr(X+6,2)} offset:50000")
    Lst(0); Lst(1)
    Gst(0, 2)
    Lst(2)
    a("s_waitcnt lgkmcnt(0)")
    a.lab("Lc_loop")
    for j in range(4):
        Gst((j+1) % 4, 3)
        Lst((j+3) % 4)
        Cst(j)
        a(f"s_cmp_ge_u32 s{sTAIL}, 3")
        if j < 3: a("s_cbranch_scc1 Lc_done")
        else:     a("s_cbranch_scc0 Lc_loop")
    a.lab("Lc_done")
    a("s_mov_b64 exec, -1")
    S_M, S_O = 12, 16
    a("s_load_dwordx2 s[20:21], s[0:1], 0")
    a("s_load_dwordx4 s[24:27], s[0:1], 80")
    a("s_waitcnt vmcnt(0) lgkmcnt(0)")
    a("s_load_dwordx8 s[28:35], s[24:25], 0")
    srd(a, S_M, 20, E*8)
    srd(a, S_O, 26, E*8)
    a(f"s_mul_i32 s20, s2, {BE*8}")
    a(f"v_lshlrev_b32 v{P}, 3, v0")
    a(f"v_add_u32 v{P+1}, s20, v{P}")
    MV = P + 2
    for k in range(4):
        a(f"v_add_u32 v{P+10+k}, {8192*k}, v{P+1}")
        a(f"buffer_load_dwordx2 {vr(MV+2*k,2)}, v{P+10+k}, {sr(S_M,4)}, 0 offen")
    a("s_waitcnt lgkmcnt(0)")
    for k in range(4):
        for h in range(2):
            a(f"s_lshl_b32 s{36+k*4+2*h}, s{28+k*2+h}, 16")
            a(f"s_and_b32 s{36+k*4+2*h+1}, s{28+k*2+h}, 0xffff0000")
    a("s_barrier")
    AC = P + 16
    AG = P + 24
    U = P + 28
    MF = P + 32
    for k in range(4):
        if k == 3:
            a("s_cmp_lg_u32 s3, 0")
            a("s_cbranch_scc1 Lc_end")
            a(f"v_cmp_gt_u32 vcc, {BE-3072}, v0")
            a("s_and_saveexec_b64 s[22:23], vcc")
        a(f"v_add_u32 v{P+14}, {ACC0 + 8192*k}, v{P}")
        a(f"v_add_u32 v{P+15}, 50000, v{P+14}")
        a(f"ds_read_b64 {vr(AC,2)}, v{P+14}")
        a(f"ds_read_b64 {vr(AC+2,2)}, v{P+14} offset:25000")
        a(f"ds_read_b64 {vr(AC+4,2)}, v{P+15}")
        a(f"ds_read_b64 {vr(AC+6,2)}, v{P+15} offset:25000")
        a("s_waitcnt lgkmcnt(0)")
        for d in range(4):
            a(f"v_cvt_f32_f64 v{AG+d}, {vr(AC+2*d,2)}")
        for d in range(4):
            a(f"v_mul_f32 v{U+d}, s{36+d}, v{AG}")
        for kk in range(1, 4):
            for d in range(4):
                a(f"v_fmac_f32 v{U+d}, s{36+kk*4+d}, v{AG+kk}")
        a("s_waitcnt vmcnt(3)")
        mv = MV + 2*k
        a(f"v_lshlrev_b32 v{MF}, 16, v{mv}")
        a(f"v_and_b32 v{MF+1}, 0xffff0000, v{mv}")
        a(f"v_lshlrev_b32 v{MF+2}, 16, v{mv+1}")
        a(f"v_and_b32 v{MF+3}, 0xffff0000, v{mv+1}")
        for d in range(4):
            a(f"v_fmac_f32 v{MF+d}, v{U+d}, v{H+4*k+d}")
        a(f"v_cvt_pk_bf16_f32 v{U}, v{MF}, v{MF+1}")
        a(f"v_cvt_pk_bf16_f32 v{U+1}, v{MF+2}, v{MF+3}")
        a(f"buffer_store_dwordx2 {vr(U,2)}, v{P+10+k}, {sr(S_O,4)}, 0 offen")
    a.lab("Lc_end")
    a("s_endpgm")
    return a.text()

HEADER = """; GemNet triplet aggregation: two launches.
; @launch kernel=prod_kernel grid=(256,1,1) block=(1024,1,1) lds={l1}
; @launch kernel=cons_kernel grid=(256,1,1) block=(1024,1,1) lds={l2}
.amdgcn_target "amdgcn-amd-amdhsa--gfx950"
.text
"""
def kd(name, vg, sg):
    return f""".p2align 6
.amdhsa_kernel {name}
  .amdhsa_next_free_vgpr {vg}
  .amdhsa_next_free_sgpr {sg}
  .amdhsa_accum_offset {vg}
  .amdhsa_group_segment_fixed_size 0
  .amdhsa_kernarg_size 112
  .amdhsa_user_sgpr_count 2
  .amdhsa_user_sgpr_kernarg_segment_ptr 1
  .amdhsa_system_sgpr_workgroup_id_x 1
  .amdhsa_float_denorm_mode_32 3
.end_amdhsa_kernel
"""
def build(opt):
    s = HEADER.format(l1=K1_LDS, l2=K2_LDS)
    for name, body in (("prod_kernel", gen_prod(opt)), ("cons_kernel", gen_cons(opt))):
        s += f".globl {name}\n.p2align 8\n.type {name},@function\n{body}\n"
    s += '.section .rodata,"a"\n' + kd("prod_kernel", 128, 102) + kd("cons_kernel", 128, 102)
    return s

if __name__ == "__main__":
    opt = {}
    out = sys.argv[1]
    for kv in sys.argv[2:]:
        k, v = kv.split("=", 1); opt[k] = v.replace("_", " ") if k.endswith(("_ld", "_st")) else v
    open(out, "w").write(build(opt))
```

```python
import sys

E = 800000
T = 25600000
NB = 256
BE = 3125
CH = 25600
NCH = 1000
REC_STRIDE = 153600
WORD_OFF = 51200
OFFS_OFF = NCH * REC_STRIDE
OFFS_STRIDE = 2048
OFFS_END = OFFS_OFF + NCH * OFFS_STRIDE
MD_OFF = (OFFS_END + 4095) // 4096 * 4096
MAGIC_B = (2**32 + BE - 1) // BE
MAGIC_H = 10737
assert (E - 1) * MAGIC_H >> 32 == 1
for x in (0, 3124, 3125, 6249, 6250, 799999, 796874, 796875):
    assert (x * MAGIC_B) >> 32 == x // BE

class A:
    def __init__(s): s.l = []
    def __call__(s, t):
        for x in t.strip().split("\n"): s.l.append("  " + x.strip())
    def lab(s, n): s.l.append(n + ":")
    def text(s): return "\n".join(s.l)

def vr(b, n): return f"v[{b}:{b+n-1}]"
def sr(b, n): return f"s[{b}:{b+n-1}]"

def srd(a, dst, plo, nbytes, stride=0):
    a(f"s_mov_b32 s{dst}, s{plo}")
    a(f"s_and_b32 s{dst+1}, s{plo+1}, 0xffff")
    if stride: a(f"s_or_b32 s{dst+1}, s{dst+1}, {stride << 16}")
    a(f"s_mov_b32 s{dst+2}, {nbytes}")
    a(f"s_mov_b32 s{dst+3}, 0x00020000")

def stamp_init(a, opt, sbase):
    if not opt.get("stamp"): return
    a(f"s_load_dwordx2 s[{sbase}:{sbase+1}], s[0:1], 96")
    a("s_waitcnt lgkmcnt(0)")
    a(f"s_and_b32 s{sbase+1}, s{sbase+1}, 0xffff")
    a(f"s_mov_b32 s{sbase+2}, 256")
    a(f"s_mov_b32 s{sbase+3}, 0x00020000")
def stamp(a, opt, sbase, stmp, swave, idx, vtmp):
    if not opt.get("stamp"): return
    u = len(a.l)
    a(f"s_memrealtime s[{stmp}:{stmp+1}]" if opt["stamp"] != "2" else f"s_memtime s[{stmp}:{stmp+1}]")
    a(f"s_mov_b32 s{stmp+2}, 999")
    a(f"s_cmp_eq_u32 s2, 0")
    a(f"s_cselect_b32 s{stmp+2}, 0, s{stmp+2}")
    a(f"s_cmp_eq_u32 s2, 200")
    a(f"s_cselect_b32 s{stmp+2}, 2, s{stmp+2}")
    a(f"s_cmp_eq_u32 s{swave}, 15")
    a(f"s_cselect_b32 s{stmp+3}, 1, 999")
    a(f"s_cmp_eq_u32 s{swave}, 0")
    a(f"s_cselect_b32 s{stmp+3}, 0, s{stmp+3}")
    a(f"s_add_u32 s{stmp+2}, s{stmp+2}, s{stmp+3}")
    a(f"s_lshl_b32 s{stmp+2}, s{stmp+2}, 5")
    a(f"s_add_u32 s{stmp+2}, s{stmp+2}, {idx*4}")
    a("s_waitcnt lgkmcnt(0)")
    a(f"s_mov_b64 s[{stmp+4}:{stmp+5}], exec")
    a("s_mov_b64 exec, 1")
    a(f"v_mov_b32 v{vtmp}, s{stmp}")
    a(f"v_mov_b32 v{vtmp+1}, s{stmp+2}")
    a(f"buffer_store_dword v{vtmp}, v{vtmp+1}, s[{sbase}:{sbase+3}], 0 offen")
    a(f"s_mov_b64 exec, s[{stmp+4}:{stmp+5}]")

def stampmax(a, opt, sbase, stmp, idx, vtmp, swave):
    if not opt.get("stamp") or opt.get("stamp") == "3": return
    u = len(a.l)
    a(f"s_cmp_lg_u32 s{swave}, 0")
    a(f"s_cbranch_scc1 Lsm{u}")
    a(f"s_memrealtime s[{stmp}:{stmp+1}]")
    a("s_waitcnt lgkmcnt(0)")
    a("s_mov_b64 exec, 1")
    a(f"v_mov_b32 v{vtmp}, s{stmp}")
    a(f"v_mov_b32 v{vtmp+1}, {idx*4}")
    a(f"buffer_atomic_umax v{vtmp}, v{vtmp+1}, s[{sbase}:{sbase+3}], 0 offen")
    a.lab(f"Lsm{u}")
def wgrec(a, opt, sbase, stmp, swave, slot, vtmp, swg="s2"):
    if opt.get("stamp") != "3": return
    u = len(a.l)
    a(f"s_cmp_lg_u32 s{swave}, 0")
    a(f"s_cbranch_scc1 Lwr{u}")
    a(f"s_memrealtime s[{stmp}:{stmp+1}]")
    a(f"s_getreg_b32 s{stmp+2}, hwreg(HW_REG_XCC_ID)")
    a(f"s_lshl_b32 s{stmp+3}, {swg}, 4")
    a(f"s_add_u32 s{stmp+3}, s{stmp+3}, {2048 + slot*4}")
    a("s_waitcnt lgkmcnt(0)")
    a(f"s_mov_b32 s{sbase+2}, 65536")
    a(f"s_mov_b64 s[{stmp+4}:{stmp+5}], exec")
    a("s_mov_b64 exec, 1")
    a(f"v_mov_b32 v{vtmp}, s{stmp}")
    a(f"v_mov_b32 v{vtmp+1}, s{stmp+3}")
    a(f"buffer_store_dword v{vtmp}, v{vtmp+1}, s[{sbase}:{sbase+3}], 0 offen")
    if slot == 0:
        a(f"v_mov_b32 v{vtmp}, s{stmp+2}")
        a(f"buffer_store_dword v{vtmp}, v{vtmp+1}, s[{sbase}:{sbase+3}], 0 offen offset:12")
    a(f"s_mov_b64 exec, s[{stmp+4}:{stmp+5}]")
    a.lab(f"Lwr{u}")
def stampv(a, opt, sbase, stmp, swave, sidx, vtmp):
    n0 = len(a.l)
    stamp(a, opt, sbase, stmp, swave, 0, vtmp)
    for i in range(n0, len(a.l)):
        if a.l[i].strip() == f"s_add_u32 s{stmp+2}, s{stmp+2}, 0":
            a.l[i] = f"  s_lshl_b32 s{sidx}, s{sidx}, 2\n  s_add_u32 s{stmp+2}, s{stmp+2}, s{sidx}"

K1_CNT = 153600
K1_LDS = K1_CNT + 4096 + 64

def gen_prod(opt):
    a = A()
    NT = opt.get("k1_ld", " nt")
    ST = opt.get("k1_st", "")
    S_IN, S_OUT, S_ANG, S_WS, S_M, S_MD = 16, 20, 24, 28, 32, 36
    S_DBG = 88
    DYN = not opt.get("static")
    K1_TK = K1_CNT + 4096
    sC, sN, sT, sWAVE, sB4, sB2, sRB = 64, 65, 66, 67, 68, 69, 70
    sMAGB, sNEG, sMAGH, sCNT = 71, 72, 73, 74
    vT16, vFOUR, vA = 1, 2, 3
    SET = {"A": dict(o=4, i=28, ot=112, it=113), "B": dict(o=52, i=76, ot=114, it=115)}
    ANG, ANGT = 100, 116
    TMP = list(range(117, 128))
    def oreg(S, r): return S["o"] + r if r < 24 else S["ot"]
    def ireg(S, r): return S["i"] + r if r < 24 else S["it"]

    def load_idx(S, sChunk):
        a(f"s_mul_i32 s{sB4}, s{sChunk}, {CH*4}")
        a(f"v_lshrrev_b32 v{TMP[0]}, 2, v{vT16}")
        for (srdr, key, tkey) in ((S_OUT, "o", "ot"), (S_IN, "i", "it")):
            for j in range(6):
                a(f"s_add_u32 s{sT}, s{sB4}, {j*16384}")
                a(f"buffer_load_dwordx4 {vr(S[key]+4*j,4)}, v{vT16}, {sr(srdr,4)}, s{sT} offen{NT}")
            a(f"s_add_u32 s{sT}, s{sB4}, {98304}")
            a(f"buffer_load_dword v{S[tkey]}, v{TMP[0]}, {sr(srdr,4)}, s{sT} offen{NT}")
    def load_ang(sChunk):
        a(f"s_mul_i32 s{sB2}, s{sChunk}, {CH*2}")
        a(f"v_lshrrev_b32 v{TMP[0]}, 1, v{vT16}")
        a(f"v_lshrrev_b32 v{TMP[1]}, 3, v{vT16}")
        for j in range(6):
            a(f"s_add_u32 s{sT}, s{sB2}, {j*8192}")
            a(f"buffer_load_dwordx2 {vr(ANG+2*j,2)}, v{TMP[0]}, {sr(S_ANG,4)}, s{sT} offen{NT}")
        a(f"s_add_u32 s{sT}, s{sB2}, {49152}")
        a(f"buffer_load_ushort v{ANGT}, v{TMP[1]}, {sr(S_ANG,4)}, s{sT} offen{NT}")

    a.lab("prod_kernel")
    a("s_cmp_ge_u32 s2, 256")
    a("s_cbranch_scc1 Lp_exit")
    if opt.get("stamp"):
        a("v_readfirstlane_b32 s67, v0")
        a("s_nop 3")
        a("s_lshr_b32 s67, s67, 6")
        stamp_init(a, opt, 76)
        stamp(a, opt, 76, 80, 67, 0, 126)
        wgrec(a, opt, 76, 80, 67, 0, 126)
    a("s_load_dwordx4 s[4:7], s[0:1], 0")
    a("s_load_dwordx2 s[8:9], s[0:1], 16")
    a("s_load_dwordx2 s[10:11], s[0:1], 32")
    a("s_load_dwordx2 s[12:13], s[0:1], 72")
    a("s_load_dwordx2 s[14:15], s[0:1], 104")
    a("s_load_dwordx2 s[92:93], s[0:1], 96")
    a(f"v_lshlrev_b32 v{vT16}, 4, v0")
    a(f"v_mov_b32 v{vFOUR}, 4")
    a(f"v_readfirstlane_b32 s{sWAVE}, v0")
    a(f"s_mov_b32 s{sMAGB}, {MAGIC_B}")
    a(f"s_mov_b32 s{sNEG}, {-BE & 0xffffffff}")
    a(f"s_mov_b32 s{sMAGH}, {MAGIC_H}")
    a(f"s_mov_b32 s{sCNT}, {K1_CNT}")
    a(f"s_lshr_b32 s{sWAVE}, s{sWAVE}, 6")
    a("s_waitcnt lgkmcnt(0)")
    a("s_load_dwordx8 s[40:47], s[12:13], 0")
    srd(a, S_IN, 6, T*4)
    srd(a, S_OUT, 8, T*4)
    srd(a, S_ANG, 10, T*2)
    srd(a, S_WS, 14, OFFS_END)
    srd(a, S_M, 4, E*8)
    srd(a, S_DBG, 92, 256)
    a(f"s_add_u32 s14, s14, {MD_OFF}")
    a("s_addc_u32 s15, s15, 0")
    srd(a, S_MD, 14, E*8)
    a(f"s_mov_b32 s{sC}, s2")
    a(f"s_add_u32 s{sN}, s2, 256")
    a(f"v_mov_b32 v{TMP[2]}, 0")
    a(f"v_lshlrev_b32 v{TMP[3]}, 2, v0")
    a(f"v_add_u32 v{TMP[3]}, {K1_CNT}, v{TMP[3]}")
    a(f"ds_write_b32 v{TMP[3]}, v{TMP[2]}")
    B = SET["B"]
    a("s_cmp_ge_u32 s2, 196")
    a("s_cbranch_scc1 Lp_nomd")
    a("s_lshl_b32 s3, s2, 15")
    a(f"v_add_u32 v{TMP[4]}, s3, v{vT16}")
    a(f"v_add_u32 v{TMP[5]}, 16384, v{TMP[4]}")
    a(f"buffer_load_dwordx4 {vr(B['o'],4)}, v{TMP[4]}, {sr(S_M,4)}, 0 offen")
    a(f"buffer_load_dwordx4 {vr(B['o']+4,4)}, v{TMP[5]}, {sr(S_M,4)}, 0 offen")
    load_idx(SET["A"], sC)
    load_ang(sC)
    a("s_waitcnt lgkmcnt(0)")
    for k in range(4):
        for h in range(2):
            a(f"s_lshl_b32 s{48+k*4+2*h}, s{40+k*2+h}, 16")
            a(f"s_and_b32 s{48+k*4+2*h+1}, s{40+k*2+h}, 0xffff0000")
    a("s_waitcnt vmcnt(21)")
    for q in range(4):
        r0 = B['o'] + 2*q
        mm = [B['i'] + k for k in range(4)]
        a(f"v_lshlrev_b32 v{mm[0]}, 16, v{r0}")
        a(f"v_and_b32 v{mm[1]}, 0xffff0000, v{r0}")
        a(f"v_lshlrev_b32 v{mm[2]}, 16, v{r0+1}")
        a(f"v_and_b32 v{mm[3]}, 0xffff0000, v{r0+1}")
        acc = [B['i'] + 4 + d for d in range(4)]
        for d in range(4):
            a(f"v_mul_f32 v{acc[d]}, s{48+d}, v{mm[0]}")
        for k in range(1, 4):
            for d in range(4):
                a(f"v_fmac_f32 v{acc[d]}, s{48+k*4+d}, v{mm[k]}")
        o = B['o'] + 8 + 2*q
        a(f"v_cvt_pk_bf16_f32 v{o}, v{acc[0]}, v{acc[1]}")
        a(f"v_cvt_pk_bf16_f32 v{o+1}, v{acc[2]}, v{acc[3]}")
    a(f"buffer_store_dwordx4 {vr(B['o']+8,4)}, v{TMP[4]}, {sr(S_MD,4)}, 0 offen")
    a(f"buffer_store_dwordx4 {vr(B['o']+12,4)}, v{TMP[5]}, {sr(S_MD,4)}, 0 offen")
    a("s_waitcnt vmcnt(2)")
    a("s_branch Lp_start")
    a.lab("Lp_nomd")
    load_idx(SET["A"], sC)
    load_ang(sC)
    a("s_waitcnt vmcnt(0)")
    a.lab("Lp_start")
    a("s_waitcnt lgkmcnt(0)")
    a("s_barrier")
    stamp(a, opt, 76, 80, 67, 1, 126)

    def body(X, Y, n):
        a.lab(f"Lp_body{n}")
        if not DYN: a(f"s_add_u32 s{sN}, s{sC}, 256")
        a(f"s_cmp_lt_u32 s{sN}, {NCH}")
        a(f"s_cbranch_scc0 Lp_noy{n}")
        if DYN:
            a(f"s_cmp_lg_u32 s{sWAVE}, 0")
            a(f"s_cbranch_scc1 Lp_notk{n}")
            a("s_mov_b64 exec, 1")
            a(f"v_mov_b32 v{vA}, 1")
            a(f"v_mov_b32 v{TMP[0]}, 192")
            a(f"buffer_atomic_add v{vA}, v{TMP[0]}, {sr(S_DBG,4)}, 0 offen sc0")
            a("s_mov_b64 exec, -1")
            a.lab(f"Lp_notk{n}")
        load_idx(Y, sN)
        a("s_waitcnt vmcnt(30)")
        a(f"s_branch Lp_aftery{n}")
        a.lab(f"Lp_noy{n}")
        a("s_waitcnt vmcnt(16)")
        a.lab(f"Lp_aftery{n}")
        for r in range(25):
            o, i = oreg(X, r), ireg(X, r)
            tb, te, th = TMP[(3*r) % 9], TMP[(3*r+1) % 9], TMP[(3*r+2) % 9]
            a(f"v_mul_hi_u32_u24 v{tb}, s{sMAGB}, v{o}")
            a(f"v_mul_hi_u32_u24 v{th}, s{sMAGH}, v{i}")
            a(f"v_mad_i32_i24 v{te}, v{tb}, s{sNEG}, v{o}")
            a(f"v_lshl_add_u32 v{tb}, v{th}, 8, v{tb}")
            a(f"v_lshl_or_b32 v{i}, v{te}, 20, v{i}")
            a(f"v_lshl_add_u32 v{o}, v{tb}, 2, s{sCNT}")
            a(f"ds_add_u32 v{o}, v{vFOUR}")
        a("s_waitcnt lgkmcnt(0)")
        a("s_barrier")
        a(f"s_cmp_lg_u32 s{sWAVE}, 0")
        a(f"s_cbranch_scc1 Lp_noscan{n}")
        if DYN:
            a(f"s_cmp_lt_u32 s{sN}, {NCH}")
            a(f"s_cbranch_scc0 Lp_notk2{n}")
            a("s_waitcnt vmcnt(14)")
            a(f"v_mov_b32 v{TMP[0]}, {K1_TK}")
            a("s_mov_b64 exec, 1")
            a(f"ds_write_b32 v{TMP[0]}, v{vA}")
            a("s_mov_b64 exec, -1")
            a.lab(f"Lp_notk2{n}")
        c = list(range(120, 128)); vS, vE = 117, 118
        a(f"v_lshlrev_b32 v{vA}, 5, v0")
        a(f"v_add_u32 v{vA}, {K1_CNT}, v{vA}")
        a(f"ds_read_b128 {vr(120,4)}, v{vA}")
        a(f"ds_read_b128 {vr(124,4)}, v{vA} offset:16")
        a("v_mov_b32 v118, 0")
        a("v_mov_b32 v119, 0")
        a("s_waitcnt lgkmcnt(0)")
        for q in range(4):
            a(f"ds_write_b64 v{vA}, v[118:119] offset:{8*q}")
        for k in range(1, 8):
            a(f"v_add_u32 v{c[k]}, v{c[k]}, v{c[k-1]}")
        a(f"v_mov_b32 v{vS}, v{c[7]}")
        for dpp in ("row_shr:1 row_mask:0xf", "row_shr:2 row_mask:0xf", "row_shr:4 row_mask:0xf", "row_shr:8 row_mask:0xf",
                    "row_bcast:15 row_mask:0xa", "row_bcast:31 row_mask:0xc"):
            a("s_nop 1")
            a(f"v_add_u32_dpp v{vS}, v{vS}, v{vS} {dpp} bank_mask:0xf")
        a("s_waitcnt lgkmcnt(0)")
        a(f"v_sub_u32 v{vE}, v{vS}, v{c[7]}")
        for k in range(7, 0, -1):
            a(f"v_add_u32 v{c[k]}, v{vE}, v{c[k-1]}")
        a(f"v_mov_b32 v{c[0]}, v{vE}")
        a(f"ds_write_b128 v{vA}, {vr(120,4)} offset:2048")
        a(f"ds_write_b128 v{vA}, {vr(124,4)} offset:2064")
        a("s_waitcnt lgkmcnt(0)")
        for k in range(8):
            nxt = c[k+1] if k < 7 else vS
            a(f"v_sub_u32 v{vE}, v{nxt}, v{c[k]}")
            a(f"v_lshrrev_b32 v{c[k]}, 2, v{c[k]}")
            a(f"v_lshl_or_b32 v{c[k]}, v{vE}, 14, v{c[k]}")
        a(f"s_mul_i32 s{sRB}, s{sC}, {OFFS_STRIDE}")
        a(f"s_add_u32 s{sRB}, s{sRB}, {OFFS_OFF}")
        a(f"v_lshl_add_u32 v{vS}, v{vT16}, 1, s{sRB}")
        a(f"buffer_store_dwordx4 {vr(120,4)}, v{vS}, {sr(S_WS,4)}, 0 offen")
        a(f"buffer_store_dwordx4 {vr(124,4)}, v{vS}, {sr(S_WS,4)}, 0 offen offset:16")
        a.lab(f"Lp_noscan{n}")
        a("s_barrier")
        a(f"s_cmp_lt_u32 s{sN}, {NCH}")
        a(f"s_cbranch_scc0 Lp_noy2{n}")
        a("s_waitcnt vmcnt(23)")
        a(f"s_branch Lp_aftery2{n}")
        a.lab(f"Lp_noy2{n}")
        a("s_waitcnt vmcnt(9)")
        a.lab(f"Lp_aftery2{n}")
        for r in range(25):
            o = oreg(X, r)
            a(f"ds_add_rtn_u32 v{o}, v{o}, v{vFOUR} offset:2048")
        a("s_waitcnt lgkmcnt(0)")
        for r in range(25):
            o, i = oreg(X, r), ireg(X, r)
            t = TMP[r % 8]
            a(f"v_lshrrev_b32 v{t}, 1, v{o}")
            a(f"ds_write_b32 v{o}, v{i} offset:{WORD_OFF}")
            if r == 24:
                a(f"ds_write_b16 v{t}, v{ANGT}")
            elif r % 2 == 0:
                a(f"ds_write_b16 v{t}, v{ANG + r//2}")
            else:
                a(f"ds_write_b16_d16_hi v{t}, v{ANG + r//2}")
        a("s_waitcnt lgkmcnt(0)")
        a("s_barrier")
        a(f"s_cmp_lt_u32 s{sN}, {NCH}")
        a(f"s_cbranch_scc0 Lp_noy3{n}")
        load_ang(sN)
        a.lab(f"Lp_noy3{n}")
        bufs = [X["o"] + 4*q for q in range(6)] + [X["i"] + 4*q for q in range(6)]
        v1, v2 = TMP[2], TMP[3]
        a(f"v_add_u32 v{v1}, 65536, v{vT16}")
        a(f"v_add_u32 v{v2}, 131072, v{vT16}")
        def lds_addr(j):
            base = (vT16, v1, v2)[j // 4]
            return f"v{base} offset:{(j % 4) * 16384}"
        for j in range(9):
            a(f"ds_read_b128 {vr(bufs[j],4)}, {lds_addr(j)}")
        a(f"s_mul_i32 s{sB4}, s{sC}, {REC_STRIDE}")
        for j in range(9):
            a(f"s_add_u32 s{sT}, s{sB4}, {j*16384}")
            a(f"s_waitcnt lgkmcnt({8-j})")
            a(f"buffer_store_dwordx4 {vr(bufs[j],4)}, v{vT16}, {sr(S_WS,4)}, s{sT} offen{ST}")
        a(f"s_cmp_ge_u32 s{sWAVE}, 6")
        a(f"s_cbranch_scc1 Lp_no10{n}")
        a(f"ds_read_b128 {vr(bufs[9],4)}, {lds_addr(9)}")
        a(f"s_add_u32 s{sT}, s{sB4}, {9*16384}")
        a("s_waitcnt lgkmcnt(0)")
        a(f"buffer_store_dwordx4 {vr(bufs[9],4)}, v{vT16}, {sr(S_WS,4)}, s{sT} offen{ST}")
        a.lab(f"Lp_no10{n}")
        if opt.get("stamp"):
            a(f"s_lshr_b32 s86, s{sC}, 8")
            a("s_add_u32 s86, s86, 2")
            stampv(a, opt, 76, 80, 67, 86, 126)
        a(f"s_mov_b32 s{sC}, s{sN}")
        a(f"s_cmp_lt_u32 s{sC}, {NCH}")
        a("s_cbranch_scc0 Lp_end")
        if DYN:
            a(f"v_mov_b32 v{TMP[0]}, {K1_TK}")
            a(f"ds_read_b32 v{TMP[0]}, v{TMP[0]}")
            a("s_waitcnt lgkmcnt(0)")
            a(f"v_readfirstlane_b32 s{sN}, v{TMP[0]}")
            a("s_nop 3")
            a(f"s_add_u32 s{sN}, s{sN}, 512")
    body(SET["A"], SET["B"], 0)
    body(SET["B"], SET["A"], 1)
    a("s_branch Lp_body0")
    a.lab("Lp_end")
    if opt.get("stamp"):
        a("s_waitcnt vmcnt(0)")
        stamp(a, opt, 76, 80, 67, 6, 126)
        wgrec(a, opt, 76, 80, 67, 1, 126)
        stampmax(a, opt, 76, 80, 7, 126, 67)
    a.lab("Lp_exit")
    a("s_endpgm")
    return a.text()

K2_DESC = 150016
K2_Q = K2_DESC + 8000
K2_LDS = K2_Q + 64
ACC0 = 50000
QB = int(__import__('os').environ.get('QB', 4))

def gen_cons(opt):
    a = A()
    RL = opt.get("k2_ld", "")
    S_WS, S_DIST, S_MD = 4, 8, 8
    vL4, vL2, vD0, vD1, vK1, vK2 = 1, 2, 3, 4, 5, 6
    H = 8
    W = [24, 25, 26, 27]; AN = [28, 29, 30, 31]
    ST = [dict(a8=32, a8b=33, cp=34, md=36, A=40), dict(a8=44, a8b=45, cp=46, md=48, A=52)]
    X = 56
    G = 64
    M = 68
    TT = [72, 73, 74, 75]
    P = 76
    a.lab("cons_kernel")
    a("s_cmp_ge_u32 s2, 256")
    a("s_cbranch_scc1 Lc_exit")
    if opt.get("stamp"):
        a("v_readfirstlane_b32 s3, v0")
        a("s_nop 3")
        a("s_lshr_b32 s3, s3, 6")
        stamp_init(a, opt, 40)
        stamp(a, opt, 40, 44, 3, 0, 120)
    if not opt.get("nomap"):
        a("s_and_b32 s4, s2, 7")
        a("s_lshr_b32 s2, s2, 3")
        a("s_lshl_b32 s4, s4, 5")
        a("s_add_u32 s2, s2, s4")
    a("s_load_dwordx4 s[12:15], s[0:1], 24")
    a("s_load_dwordx8 s[16:23], s[0:1], 40")
    a("s_load_dwordx2 s[24:25], s[0:1], 104")
    a("v_and_b32 v7, 63, v0")
    a(f"v_lshlrev_b32 v{vL4}, 2, v7")
    a(f"v_lshlrev_b32 v{vL2}, 1, v7")
    a("v_readfirstlane_b32 s3, v0")
    a("s_waitcnt lgkmcnt(0)")
    a("s_lshr_b32 s3, s3, 6")
    a("s_load_dwordx16 s[28:43], s[22:23], 0")
    a("s_load_dwordx16 s[44:59], s[22:23], 64")
    a("s_load_dwordx4 s[92:95], s[16:17], 0")
    a("s_load_dword s100, s[18:19], 0")
    srd(a, S_WS, 24, OFFS_END)
    srd(a, S_DIST, 12, E*2)
    a("s_lshl_b32 s27, s2, 2")
    a(f"s_add_u32 s26, s27, {OFFS_OFF}")
    a(f"v_mul_u32_u24 v{P}, {OFFS_STRIDE}, v0")
    a(f"v_add_u32 v{P}, s26, v{P}")
    a(f"buffer_load_dword v{P+2}, v{P}, {sr(S_WS,4)}, 0 offen")
    a(f"buffer_load_dword v{P+3}, v{P}, {sr(S_WS,4)}, 0 offen offset:1024")
    a(f"s_mul_i32 s27, s2, {BE*2}")
    a(f"v_lshlrev_b32 v{P+1}, 1, v0")
    a(f"v_add_u32 v{P+1}, s27, v{P+1}")
    DI = P + 4
    for k in range(4):
        a(f"buffer_load_ushort v{DI+k}, v{P+1}, {sr(S_DIST,4)}, 0 offen offset:{2048*k if k < 2 else 0}" if k < 2 else
          f"buffer_load_ushort v{DI+k}, v{P}, {sr(S_DIST,4)}, 0 offen offset:{2048*(k-2)}")
        if k == 1:
            a(f"v_add_u32 v{P}, 4096, v{P+1}")
    Z = P + 8
    for q in range(4): a(f"v_mov_b32 v{Z+q}, 0")
    a(f"v_lshlrev_b32 v{Z+4}, 4, v0")
    a(f"v_add_u32 v{Z+4}, {ACC0}, v{Z+4}")
    a(f"v_add_u32 v{Z+5}, 65536, v{Z+4}")
    for j in range(6):
        base = Z+4 if j < 4 else Z+5
        a(f"ds_write_b128 v{base}, {vr(Z,4)} offset:{(j % 4)*16384}")
    a(f"v_cmp_gt_u32 vcc, 106, v0")
    a("s_and_saveexec_b64 s[26:27], vcc")
    a("s_cbranch_execz Lc_z")
    a(f"ds_write_b128 v{Z+5}, {vr(Z,4)} offset:{2*16384}")
    a.lab("Lc_z")
    a("s_mov_b64 exec, s[26:27]")
    for q in range(4): a(f"v_mov_b32 v{AN[q]}, 0")
    a("s_waitcnt lgkmcnt(0)")
    def dw(base, row, d): return base + 2*row + d//2
    for l in range(2):
        for d in range(4):
            for rp in range(4):
                op = "s_pack_ll_b32_b16" if d % 2 == 0 else "s_pack_hh_b32_b16"
                a(f"{op} s{60 + (l*4+d)*4 + rp}, s{dw(28, 4*rp+l, d)}, s{dw(28, 4*rp+2+l, d)}")
    a("s_load_dwordx16 s[28:43], s[20:21], 0")
    for r in range(7, -1, -1):
        if r % 2: a(f"s_and_b32 s{92+r}, s{92+r//2}, 0xffff0000")
        else:     a(f"s_lshl_b32 s{92+r}, s{92+r//2}, 16")
    a("s_lshl_b32 s26, s100, 16")
    a("s_and_b32 s27, s100, 0xffff0000")
    a(f"v_mov_b32 v{vK1}, s26")
    a(f"v_mov_b32 v{vK2}, s27")
    a(f"v_mul_f32 v{vK1}, 0.15915494, v{vK1}")
    a(f"v_mul_f32 v{vK2}, 0.15915494, v{vK2}")
    a("s_waitcnt lgkmcnt(0)")
    for d in range(4):
        for rp in range(4):
            op = "s_pack_ll_b32_b16" if d % 2 == 0 else "s_pack_hh_b32_b16"
            a(f"{op} s{12 + d*4 + rp}, s{dw(28, 2*rp, d)}, s{dw(28, 2*rp+1, d)}")
    a(f"s_mov_b32 s28, 0xc166d4ca")
    a("s_waitcnt vmcnt(4)")
    s0, s1, s2 = TT[0], TT[1], TT[2]
    a(f"v_mov_b32 v{vD0}, v{P+2}")
    a(f"v_mov_b32 v{vD1}, v{P+3}")
    a(f"v_lshlrev_b32 v{s0}, 2, v0")
    a(f"v_add_u32 v{s0}, {K2_DESC}, v{s0}")
    a(f"v_mov_b32 v{s1}, 0")
    a(f"v_mov_b32 v{s2}, {K2_Q}")
    a(f"v_cmp_gt_u32 vcc, {NCH}, v0")
    a("s_and_saveexec_b64 s[30:31], vcc")
    a(f"ds_write_b32 v{s0}, v{vD0}")
    a(f"ds_write_b32 v{s0}, v{vD1} offset:{4*NCH}")
    a(f"ds_write_b32 v{s2}, v{s1}")
    a("s_mov_b64 exec, s[30:31]")
    a("s_waitcnt vmcnt(0)")
    RB = P + 16
    RP = P + 24
    AA = P + 28
    for k in range(4):
        if k == 3:
            a("s_cmp_lg_u32 s3, 0")
            a("s_cbranch_scc1 Lc_pro_done")
        a(f"v_lshlrev_b32 v{DI+k}, 16, v{DI+k}")
        for r in range(8):
            a(f"v_subrev_f32 v{RB+r}, s{92+r}, v{DI+k}")
        for r in range(8):
            a(f"v_mul_f32 v{RB+r}, v{RB+r}, v{RB+r}")
        for r in range(8):
            a(f"v_mul_f32 v{RB+r}, s28, v{RB+r}")
        for r in range(8):
            a(f"v_exp_f32 v{RB+r}, v{RB+r}")
        a("s_nop 0")
        for rp in range(4):
            a(f"v_cvt_pk_bf16_f32 v{RP+rp}, v{RB+2*rp}, v{RB+2*rp+1}")
        for j in range(8):
            a(f"v_dot2_f32_bf16 v{AA+j}, v{RP}, s{60+j*4}, 0")
        for d in range(4):
            a(f"v_dot2_f32_bf16 v{H+4*k+d}, v{RP}, s{12+d*4}, 0")
        for rp in range(1, 4):
            for j in range(8):
                a(f"v_dot2_f32_bf16 v{AA+j}, v{RP+rp}, s{60+j*4+rp}, v{AA+j}")
            for d in range(4):
                a(f"v_dot2_f32_bf16 v{H+4*k+d}, v{RP+rp}, s{12+d*4+rp}, v{H+4*k+d}")
        for d in range(4):
            a(f"v_cvt_pk_bf16_f32 v{RB+d}, v{AA+d}, v{AA+4+d}")
        a(f"v_lshlrev_b32 v{RP}, 4, v0")
        if k < 3:
            a(f"ds_write_b128 v{RP}, {vr(RB,4)} offset:{16384*k}")
        else:
            a(f"v_cmp_gt_u32 vcc, {BE-3072}, v0")
            a("s_and_saveexec_b64 s[26:27], vcc")
            a(f"ds_write_b128 v{RP}, {vr(RB,4)} offset:{16384*k}")
            a("s_mov_b64 exec, s[26:27]")
    a.lab("Lc_pro_done")
    a("s_load_dwordx2 s[24:25], s[0:1], 104")
    a("s_waitcnt lgkmcnt(0)")
    a(f"s_add_u32 s24, s24, {MD_OFF}")
    a("s_addc_u32 s25, s25, 0")
    if opt.get("offen"): srd(a, S_MD, 24, E*8)
    else: srd(a, S_MD, 24, E, stride=8)
    a("s_barrier")
    stamp_init(a, opt, 40)
    stamp(a, opt, 40, 44, 3, 1, 120)

    MM = [12, 14, 16, 18]; MA = [20, 22, 24, 26]
    sI, sREM, sCB, sOW, sOA, sD, sNN, sPH, sTAIL, sCB0, sT = 28, 29, 30, 31, 32, 33, 34, 35, 36, 37, 38
    for s in (sREM, sTAIL, 54, 55, 56, 57): a(f"s_mov_b32 s{s}, 0")
    a(f"s_mov_b32 s{sI}, {QB}")
    vQ, vONE, vDA = 7, vD1, TT[3]
    a(f"v_mov_b32 v{vQ}, {K2_Q}")
    a(f"v_mov_b32 v{vONE}, {QB}")
    uid = [0]
    def Lst(k):
        u = uid[0]; uid[0] += 1
        mm, ma = MM[k], MA[k]
        a(f"s_cmp_lg_u32 s{sREM}, 0")
        a(f"s_cbranch_scc1 Lh{u}")
        a.lab(f"Ln{u}")
        a(f"s_cmp_lt_u32 s{sI}, {QB}")
        a(f"s_cbranch_scc1 Lr{u}")
        a(f"s_cmp_lg_u32 s{sTAIL}, 0")
        a(f"s_cbranch_scc1 Lx{u}")
        a("s_mov_b64 exec, 1")
        a(f"ds_add_rtn_u32 v{vD0}, v{vQ}, v{vONE}")
        a("s_waitcnt lgkmcnt(0)")
        a(f"v_readfirstlane_b32 s{sPH}, v{vD0}")
        a(f"s_mov_b64 exec, {(1 << QB) - 1}")
        a(f"s_cmp_ge_u32 s{sPH}, {2*NCH}")
        a(f"s_cbranch_scc1 Lx{u}")
        a(f"s_lshl_b32 s{sT}, s{sPH}, 2")
        a(f"s_add_u32 s{sT}, s{sT}, {K2_DESC}")
        a(f"v_add_u32 v{vDA}, s{sT}, v{vL4}")
        a(f"ds_read_b32 v{vD0}, v{vDA}")
        a(f"s_sub_u32 s{sT}, s{sPH}, {NCH}")
        a(f"s_cmp_ge_u32 s{sPH}, {NCH}")
        a(f"s_cselect_b32 s{sT}, s{sT}, s{sPH}")
        a(f"s_mul_i32 s{sCB}, s{sT}, {REC_STRIDE}")
        if opt.get("samechunk"): a(f"s_and_b32 s{sCB}, s{sT}, 7\ns_mul_i32 s{sCB}, s{sCB}, {REC_STRIDE}")
        a(f"s_mov_b32 s{sI}, 0")
        a("s_waitcnt lgkmcnt(0)")
        a.lab(f"Lr{u}")
        a(f"v_readlane_b32 s{sD}, v{vD0}, s{sI}")
        a(f"s_add_u32 s{sI}, s{sI}, 1")
        a(f"s_add_u32 s{sOW}, s{sCB}, {WORD_OFF}")
        a(f"s_lshr_b32 s{sREM}, s{sD}, 16")
        a(f"s_and_b32 s{sD}, s{sD}, 0xffff")
        a(f"s_lshl_b32 s{sT}, s{sD}, 1")
        a(f"s_add_u32 s{sOA}, s{sCB}, s{sT}")
        a(f"s_lshl_b32 s{sT}, s{sD}, 2")
        a(f"s_add_u32 s{sOW}, s{sOW}, s{sT}")
        a(f"s_add_u32 s{sCB}, s{sCB}, {REC_STRIDE}")
        if opt.get("spf"):
            a(f"s_cmp_ge_u32 s{sI}, {QB}")
            a(f"s_cbranch_scc1 Lnp{u}")
            a(f"v_readlane_b32 s50, v{vD0}, s{sI}")
            a(f"s_add_u32 s51, s{sCB}, {WORD_OFF}")
            a("s_lshr_b32 s52, s50, 16")
            a("s_and_b32 s50, s50, 0xffff")
            a("s_lshl_b32 s53, s50, 2")
            a("s_add_u32 s54, s51, s53")
            a("s_lshl_b32 s53, s52, 2")
            a("s_add_u32 s55, s54, s53")
            a("s_sub_u32 s55, s55, 4")
            a("s_lshl_b32 s53, s50, 1")
            a(f"s_add_u32 s56, s{sCB}, s53")
            a("s_lshl_b32 s53, s52, 1")
            a("s_add_u32 s57, s56, s53")
            a("s_sub_u32 s57, s57, 2")
            a.lab(f"Lnp{u}")
        a(f"s_cmp_eq_u32 s{sREM}, 0")
        a(f"s_cbranch_scc1 Ln{u}")
        a.lab(f"Lh{u}")
        a(f"s_min_u32 s{sNN}, s{sREM}, 64")
        a(f"s_sub_u32 s{sREM}, s{sREM}, s{sNN}")
        a(f"s_bfm_b64 {sr(mm,2)}, s{sNN}, 0")
        a(f"s_cmp_eq_u32 s{sNN}, 64")
        a(f"s_cselect_b64 {sr(mm,2)}, -1, {sr(mm,2)}")
        a(f"s_mov_b64 {sr(ma,2)}, {sr(mm,2)}")
        a(f"s_mov_b64 exec, {sr(mm,2)}")
        a(f"buffer_load_dword v{W[k]}, v{vL4}, {sr(S_WS,4)}, s{sOW} offen{RL}")
        a(f"buffer_load_short_d16_hi v{AN[k]}, v{vL2}, {sr(S_WS,4)}, s{sOA} offen{RL}")
        a(f"s_add_u32 s{sOW}, s{sOW}, 256")
        a(f"s_add_u32 s{sOA}, s{sOA}, 128")
        a(f"s_branch Ld{u}")
        a.lab(f"Lx{u}")
        a(f"s_add_u32 s{sTAIL}, s{sTAIL}, 1")
        a(f"s_mov_b64 {sr(mm,2)}, 1")
        a(f"s_mov_b64 {sr(ma,2)}, 0")
        a("s_mov_b64 exec, 1")
        a(f"s_mov_b32 s{sT}, {WORD_OFF}")
        a(f"buffer_load_dword v{W[k]}, v{vL4}, {sr(S_WS,4)}, s{sT} offen{RL}")
        a(f"buffer_load_short_d16_hi v{AN[k]}, v{vL2}, {sr(S_WS,4)}, 0 offen{RL}")
        a.lab(f"Ld{u}")
    def Gst(k, wait):
        st = ST[k % 2]; w = W[k]; an = AN[k]
        a(f"s_waitcnt vmcnt({wait})")
        a(f"s_mov_b64 exec, {sr(MM[k],2)}")
        a(f"v_and_b32 v{TT[0]}, {opt.get('gmask','0xfffff')}, v{w}")
        a(f"v_lshrrev_b32 v{st['a8']}, 17, v{w}")
        if opt.get("gscale"):
            a(f"v_mov_b32 v{TT[3]}, {int(opt['gscale'])*2**32//800000}")
            a(f"v_mul_hi_u32 v{TT[0]}, v{TT[0]}, v{TT[3]}")
        if opt.get("nogather"): a(f"v_mov_b32 v{TT[0]}, 0")
        if opt.get("offen"):
            a(f"v_lshlrev_b32 v{TT[0]}, 3, v{TT[0]}")
            a(f"buffer_load_dwordx2 {vr(st['md'],2)}, v{TT[0]}, {sr(S_MD,4)}, 0 offen{opt.get('k2_g_ld','')}")
        else:
            a(f"buffer_load_dwordx2 {vr(st['md'],2)}, v{TT[0]}, {sr(S_MD,4)}, 0 idxen{opt.get('k2_g_ld','')}")
        a(f"v_and_b32 v{st['a8']}, 0x7ff8, v{st['a8']}")
        a(f"v_mul_f32 v{TT[1]}, v{vK1}, v{an}")
        a(f"v_add_u32 v{TT[0]}, v{st['a8']}, v{st['a8']}")
        a(f"v_mul_f32 v{TT[2]}, v{vK2}, v{an}")
        a(f"ds_read_b128 {vr(st['A'],4)}, v{TT[0]}")
        a(f"v_fract_f32 v{TT[1]}, v{TT[1]}")
        a(f"v_fract_f32 v{TT[2]}, v{TT[2]}")
        a(f"v_cos_f32 v{TT[1]}, v{TT[1]}")
        a(f"v_cos_f32 v{TT[2]}, v{TT[2]}")
        a(f"v_add_u32 v{st['a8b']}, {ACC0 + 25000}, v{st['a8']}")
        a(f"v_cvt_pk_bf16_f32 v{st['cp']}, v{TT[1]}, v{TT[2]}")
    def Cst(k):
        st = ST[k % 2]
        a("s_waitcnt vmcnt(5) lgkmcnt(5)")
        if opt.get("spf"):
            a(f"s_buffer_load_dword s100, {sr(S_WS,4)}, s54")
            a(f"s_buffer_load_dword s100, {sr(S_WS,4)}, s54 offset:0x80")
            a(f"s_buffer_load_dword s100, {sr(S_WS,4)}, s55")
            a(f"s_buffer_load_dword s100, {sr(S_WS,4)}, s56")
            a(f"s_buffer_load_dword s100, {sr(S_WS,4)}, s57")
        a(f"s_mov_b64 exec, {sr(MA[k],2)}")
        md = st['md']
        for d in range(4):
            a(f"v_dot2_f32_bf16 v{G+d}, v{st['A']+d}, v{st['cp']}, 0")
        a(f"v_lshlrev_b32 v{M}, 16, v{md}")
        a(f"v_and_b32 v{M+1}, 0xffff0000, v{md}")
        a(f"v_lshlrev_b32 v{M+2}, 16, v{md+1}")
        a(f"v_and_b32 v{M+3}, 0xffff0000, v{md+1}")
        for d in range(4):
            a(f"v_mul_f32 v{G+d}, v{M+d}, v{G+d}")
        for d in range(4):
            a(f"v_cvt_f64_f32 {vr(X+2*d,2)}, v{G+d}")
        if opt.get("noatom"):
            for q in range(4): a(f"ds_read_b32 v{X+q}, v{vL4}")
            return
        a(f"ds_add_f64 v{st['a8']}, {vr(X,2)} offset:{ACC0}")
        a(f"ds_add_f64 v{st['a8b']}, {vr(X+2,2)}")
        a(f"ds_add_f64 v{st['a8b']}, {vr(X+4,2)} offset:25000")
        a(f"ds_add_f64 v{st['a8b']}, {vr(X+6,2)} offset:50000")
    Lst(0); Lst(1)
    Gst(0, 2)
    Lst(2)
    a("s_waitcnt lgkmcnt(0)")
    a.lab("Lc_loop")
    for j in range(4):
        Gst((j+1) % 4, 3)
        Lst((j+3) % 4)
        Cst(j)
        a(f"s_cmp_ge_u32 s{sTAIL}, 3")
        if j < 3: a("s_cbranch_scc1 Lc_done")
        else:     a("s_cbranch_scc0 Lc_loop")
    a.lab("Lc_done")
    a("s_mov_b64 exec, -1")
    stamp(a, opt, 40, 44, 3, 3, 120)
    S_M, S_O = 12, 16
    a("s_load_dwordx2 s[20:21], s[0:1], 0")
    a("s_load_dwordx4 s[24:27], s[0:1], 80")
    a("s_waitcnt vmcnt(0) lgkmcnt(0)")
    a("s_load_dwordx8 s[28:35], s[24:25], 0")
    srd(a, S_M, 20, E*8)
    srd(a, S_O, 26, E*8)
    a(f"s_mul_i32 s20, s2, {BE*8}")
    a(f"v_lshlrev_b32 v{P}, 3, v0")
    a(f"v_add_u32 v{P+1}, s20, v{P}")
    MV = P + 2
    for k in range(4):
        a(f"v_add_u32 v{P+10+k}, {8192*k}, v{P+1}")
        a(f"buffer_load_dwordx2 {vr(MV+2*k,2)}, v{P+10+k}, {sr(S_M,4)}, 0 offen")
    a("s_waitcnt lgkmcnt(0)")
    for k in range(4):
        for h in range(2):
            a(f"s_lshl_b32 s{36+k*4+2*h}, s{28+k*2+h}, 16")
            a(f"s_and_b32 s{36+k*4+2*h+1}, s{28+k*2+h}, 0xffff0000")
    a("s_barrier")
    stamp_init(a, opt, 52)
    stamp(a, opt, 52, 56, 3, 4, 120)
    AC = P + 16
    AG = P + 24
    U = P + 28
    MF = P + 32
    for k in range(4):
        if k == 3:
            a("s_cmp_lg_u32 s3, 0")
            a("s_cbranch_scc1 Lc_end")
            a(f"v_cmp_gt_u32 vcc, {BE-3072}, v0")
            a("s_and_saveexec_b64 s[22:23], vcc")
        a(f"v_add_u32 v{P+14}, {ACC0 + 8192*k}, v{P}")
        a(f"v_add_u32 v{P+15}, 50000, v{P+14}")
        a(f"ds_read_b64 {vr(AC,2)}, v{P+14}")
        a(f"ds_read_b64 {vr(AC+2,2)}, v{P+14} offset:25000")
        a(f"ds_read_b64 {vr(AC+4,2)}, v{P+15}")
        a(f"ds_read_b64 {vr(AC+6,2)}, v{P+15} offset:25000")
        a("s_waitcnt lgkmcnt(0)")
        for d in range(4):
            a(f"v_cvt_f32_f64 v{AG+d}, {vr(AC+2*d,2)}")
        for d in range(4):
            a(f"v_mul_f32 v{U+d}, s{36+d}, v{AG}")
        for kk in range(1, 4):
            for d in range(4):
                a(f"v_fmac_f32 v{U+d}, s{36+kk*4+d}, v{AG+kk}")
        a("s_waitcnt vmcnt(3)")
        mv = MV + 2*k
        a(f"v_lshlrev_b32 v{MF}, 16, v{mv}")
        a(f"v_and_b32 v{MF+1}, 0xffff0000, v{mv}")
        a(f"v_lshlrev_b32 v{MF+2}, 16, v{mv+1}")
        a(f"v_and_b32 v{MF+3}, 0xffff0000, v{mv+1}")
        for d in range(4):
            a(f"v_fmac_f32 v{MF+d}, v{U+d}, v{H+4*k+d}")
        a(f"v_cvt_pk_bf16_f32 v{U}, v{MF}, v{MF+1}")
        a(f"v_cvt_pk_bf16_f32 v{U+1}, v{MF+2}, v{MF+3}")
        a(f"buffer_store_dwordx2 {vr(U,2)}, v{P+10+k}, {sr(S_O,4)}, 0 offen")
    a.lab("Lc_end")
    stamp_init(a, opt, 52)
    stamp(a, opt, 52, 56, 3, 5, 120)
    stampmax(a, opt, 52, 56, 7, 120, 3)
    a.lab("Lc_exit")
    a("s_endpgm")
    return a.text()

HEADER = """; GemNet triplet aggregation: two launches.
; @launch kernel=prod_kernel grid=(256,1,1) block=(1024,1,1) lds={l1}
; @launch kernel=cons_kernel grid=(256,1,1) block=(1024,1,1) lds={l2}
.amdgcn_target "amdgcn-amd-amdhsa--gfx950"
.text
"""
def kd(name, vg, sg):
    return f""".p2align 6
.amdhsa_kernel {name}
  .amdhsa_next_free_vgpr {vg}
  .amdhsa_next_free_sgpr {sg}
  .amdhsa_accum_offset {vg}
  .amdhsa_group_segment_fixed_size 0
  .amdhsa_kernarg_size 112
  .amdhsa_user_sgpr_count 2
  .amdhsa_user_sgpr_kernarg_segment_ptr 1
  .amdhsa_system_sgpr_workgroup_id_x 1
  .amdhsa_float_denorm_mode_32 3
.end_amdhsa_kernel
"""
def build(opt):
    s = HEADER.format(l1=K1_LDS, l2=K2_LDS)
    for name, body in (("prod_kernel", gen_prod(opt)), ("cons_kernel", gen_cons(opt))):
        s += f".globl {name}\n.p2align 8\n.type {name},@function\n{body}\n"
    s += '.section .rodata,"a"\n' + kd("prod_kernel", 128, 102) + kd("cons_kernel", 128, 102)
    return s

if __name__ == "__main__":
    opt = {}
    out = sys.argv[1]
    for kv in sys.argv[2:]:
        k, v = kv.split("=", 1); opt[k] = v.replace("_", " ") if k.endswith(("_ld", "_st")) else v
    open(out, "w").write(build(opt))
```

```python
import sys

E = 800000
T = 25600000
NB = 256
BE = 3125
CH = 25600
NCH = 1000
REC_STRIDE = 153600
WORD_OFF = 51200
OFFS_OFF = NCH * REC_STRIDE
OFFS_STRIDE = 2048
OFFS_END = OFFS_OFF + NCH * OFFS_STRIDE
MD_OFF = (OFFS_END + 4095) // 4096 * 4096
MAGIC_B = (2**32 + BE - 1) // BE
MAGIC_H = 10737
assert (E - 1) * MAGIC_H >> 32 == 1
for x in (0, 3124, 3125, 6249, 6250, 799999, 796874, 796875):
    assert (x * MAGIC_B) >> 32 == x // BE

class A:
    def __init__(s): s.l = []
    def __call__(s, t):
        for x in t.strip().split("\n"): s.l.append("  " + x.strip())
    def lab(s, n): s.l.append(n + ":")
    def text(s): return "\n".join(s.l)

def vr(b, n): return f"v[{b}:{b+n-1}]"
def sr(b, n): return f"s[{b}:{b+n-1}]"

def srd(a, dst, plo, nbytes, stride=0):
    a(f"s_mov_b32 s{dst}, s{plo}")
    a(f"s_and_b32 s{dst+1}, s{plo+1}, 0xffff")
    if stride: a(f"s_or_b32 s{dst+1}, s{dst+1}, {stride << 16}")
    a(f"s_mov_b32 s{dst+2}, {nbytes}")
    a(f"s_mov_b32 s{dst+3}, 0x00020000")

def stamp_init(a, opt, sbase):
    if not opt.get("stamp"): return
    a(f"s_load_dwordx2 s[{sbase}:{sbase+1}], s[0:1], 96")
    a("s_waitcnt lgkmcnt(0)")
    a(f"s_and_b32 s{sbase+1}, s{sbase+1}, 0xffff")
    a(f"s_mov_b32 s{sbase+2}, 256")
    a(f"s_mov_b32 s{sbase+3}, 0x00020000")
def stamp(a, opt, sbase, stmp, swave, idx, vtmp):
    if not opt.get("stamp"): return
    u = len(a.l)
    a(f"s_memrealtime s[{stmp}:{stmp+1}]" if opt["stamp"] != "2" else f"s_memtime s[{stmp}:{stmp+1}]")
    a(f"s_mov_b32 s{stmp+2}, 999")
    a(f"s_cmp_eq_u32 s2, 0")
    a(f"s_cselect_b32 s{stmp+2}, 0, s{stmp+2}")
    a(f"s_cmp_eq_u32 s2, 200")
    a(f"s_cselect_b32 s{stmp+2}, 2, s{stmp+2}")
    a(f"s_cmp_eq_u32 s{swave}, 15")
    a(f"s_cselect_b32 s{stmp+3}, 1, 999")
    a(f"s_cmp_eq_u32 s{swave}, 0")
    a(f"s_cselect_b32 s{stmp+3}, 0, s{stmp+3}")
    a(f"s_add_u32 s{stmp+2}, s{stmp+2}, s{stmp+3}")
    a(f"s_lshl_b32 s{stmp+2}, s{stmp+2}, 5")
    a(f"s_add_u32 s{stmp+2}, s{stmp+2}, {idx*4}")
    a("s_waitcnt lgkmcnt(0)")
    a(f"s_mov_b64 s[{stmp+4}:{stmp+5}], exec")
    a("s_mov_b64 exec, 1")
    a(f"v_mov_b32 v{vtmp}, s{stmp}")
    a(f"v_mov_b32 v{vtmp+1}, s{stmp+2}")
    a(f"buffer_store_dword v{vtmp}, v{vtmp+1}, s[{sbase}:{sbase+3}], 0 offen")
    a(f"s_mov_b64 exec, s[{stmp+4}:{stmp+5}]")

def stampmax(a, opt, sbase, stmp, idx, vtmp, swave):
    if not opt.get("stamp") or opt.get("stamp") == "3": return
    u = len(a.l)
    a(f"s_cmp_lg_u32 s{swave}, 0")
    a(f"s_cbranch_scc1 Lsm{u}")
    a(f"s_memrealtime s[{stmp}:{stmp+1}]")
    a("s_waitcnt lgkmcnt(0)")
    a("s_mov_b64 exec, 1")
    a(f"v_mov_b32 v{vtmp}, s{stmp}")
    a(f"v_mov_b32 v{vtmp+1}, {idx*4}")
    a(f"buffer_atomic_umax v{vtmp}, v{vtmp+1}, s[{sbase}:{sbase+3}], 0 offen")
    a.lab(f"Lsm{u}")
def wgrec(a, opt, sbase, stmp, swave, slot, vtmp, swg="s2"):
    if opt.get("stamp") != "3": return
    u = len(a.l)
    a(f"s_cmp_lg_u32 s{swave}, 0")
    a(f"s_cbranch_scc1 Lwr{u}")
    a(f"s_memrealtime s[{stmp}:{stmp+1}]")
    a(f"s_getreg_b32 s{stmp+2}, hwreg(HW_REG_XCC_ID)")
    a(f"s_lshl_b32 s{stmp+3}, {swg}, 4")
    a(f"s_add_u32 s{stmp+3}, s{stmp+3}, {2048 + slot*4}")
    a("s_waitcnt lgkmcnt(0)")
    a(f"s_mov_b32 s{sbase+2}, 65536")
    a(f"s_mov_b64 s[{stmp+4}:{stmp+5}], exec")
    a("s_mov_b64 exec, 1")
    a(f"v_mov_b32 v{vtmp}, s{stmp}")
    a(f"v_mov_b32 v{vtmp+1}, s{stmp+3}")
    a(f"buffer_store_dword v{vtmp}, v{vtmp+1}, s[{sbase}:{sbase+3}], 0 offen")
    if slot == 0:
        a(f"v_mov_b32 v{vtmp}, s{stmp+2}")
        a(f"buffer_store_dword v{vtmp}, v{vtmp+1}, s[{sbase}:{sbase+3}], 0 offen offset:12")
    a(f"s_mov_b64 exec, s[{stmp+4}:{stmp+5}]")
    a.lab(f"Lwr{u}")
def stampv(a, opt, sbase, stmp, swave, sidx, vtmp):
    n0 = len(a.l)
    stamp(a, opt, sbase, stmp, swave, 0, vtmp)
    for i in range(n0, len(a.l)):
        if a.l[i].strip() == f"s_add_u32 s{stmp+2}, s{stmp+2}, 0":
            a.l[i] = f"  s_lshl_b32 s{sidx}, s{sidx}, 2\n  s_add_u32 s{stmp+2}, s{stmp+2}, s{sidx}"

K1_CNT = 153600
K1_LDS = K1_CNT + 4096 + 64

def gen_prod(opt):
    a = A()
    NT = opt.get("k1_ld", " nt")
    ST = opt.get("k1_st", "")
    S_IN, S_OUT, S_ANG, S_WS, S_M, S_MD = 16, 20, 24, 28, 32, 36
    S_DBG = 88
    DYN = not opt.get("static")
    K1_TK = K1_CNT + 4096
    sC, sN, sT, sWAVE, sB4, sB2, sRB = 64, 65, 66, 67, 68, 69, 70
    sMAGB, sNEG, sMAGH, sCNT = 71, 72, 73, 74
    vT16, vFOUR, vA = 1, 2, 3
    SET = {"A": dict(o=4, i=28, ot=112, it=113), "B": dict(o=52, i=76, ot=114, it=115)}
    ANG, ANGT = 100, 116
    TMP = list(range(117, 128))
    def oreg(S, r): return S["o"] + r if r < 24 else S["ot"]
    def ireg(S, r): return S["i"] + r if r < 24 else S["it"]

    def load_idx(S, sChunk):
        a(f"s_mul_i32 s{sB4}, s{sChunk}, {CH*4}")
        a(f"v_lshrrev_b32 v{TMP[0]}, 2, v{vT16}")
        for (srdr, key, tkey) in ((S_OUT, "o", "ot"), (S_IN, "i", "it")):
            for j in range(6):
                a(f"s_add_u32 s{sT}, s{sB4}, {j*16384}")
                a(f"buffer_load_dwordx4 {vr(S[key]+4*j,4)}, v{vT16}, {sr(srdr,4)}, s{sT} offen{NT}")
            a(f"s_add_u32 s{sT}, s{sB4}, {98304}")
            a(f"buffer_load_dword v{S[tkey]}, v{TMP[0]}, {sr(srdr,4)}, s{sT} offen{NT}")
    def load_ang(sChunk):
        a(f"s_mul_i32 s{sB2}, s{sChunk}, {CH*2}")
        a(f"v_lshrrev_b32 v{TMP[0]}, 1, v{vT16}")
        a(f"v_lshrrev_b32 v{TMP[1]}, 3, v{vT16}")
        for j in range(6):
            a(f"s_add_u32 s{sT}, s{sB2}, {j*8192}")
            a(f"buffer_load_dwordx2 {vr(ANG+2*j,2)}, v{TMP[0]}, {sr(S_ANG,4)}, s{sT} offen{NT}")
        a(f"s_add_u32 s{sT}, s{sB2}, {49152}")
        a(f"buffer_load_ushort v{ANGT}, v{TMP[1]}, {sr(S_ANG,4)}, s{sT} offen{NT}")

    NP = int(opt.get("np", 256))
    a.lab("prod_kernel")
    a(f"s_cmp_ge_u32 s2, {NP}")
    a("s_cbranch_scc1 Lp_exit")
    if opt.get("stamp"):
        a("v_readfirstlane_b32 s67, v0")
        a("s_nop 3")
        a("s_lshr_b32 s67, s67, 6")
        stamp_init(a, opt, 76)
        stamp(a, opt, 76, 80, 67, 0, 126)
        wgrec(a, opt, 76, 80, 67, 0, 126)
    a("s_load_dwordx4 s[4:7], s[0:1], 0")
    a("s_load_dwordx2 s[8:9], s[0:1], 16")
    a("s_load_dwordx2 s[10:11], s[0:1], 32")
    a("s_load_dwordx2 s[12:13], s[0:1], 72")
    a("s_load_dwordx2 s[14:15], s[0:1], 104")
    a("s_load_dwordx2 s[92:93], s[0:1], 96")
    a(f"v_lshlrev_b32 v{vT16}, 4, v0")
    AOS = bool(opt.get("aos"))
    a(f"v_mov_b32 v{vFOUR}, {6 if AOS else 4}")
    a(f"v_readfirstlane_b32 s{sWAVE}, v0")
    a(f"s_mov_b32 s{sMAGB}, {MAGIC_B}")
    a(f"s_mov_b32 s{sNEG}, {-BE & 0xffffffff}")
    a(f"s_mov_b32 s{sMAGH}, {MAGIC_H}")
    a(f"s_mov_b32 s{sCNT}, {K1_CNT}")
    a(f"s_lshr_b32 s{sWAVE}, s{sWAVE}, 6")
    a("s_waitcnt lgkmcnt(0)")
    a("s_load_dwordx8 s[40:47], s[12:13], 0")
    srd(a, S_IN, 6, T*4)
    srd(a, S_OUT, 8, T*4)
    srd(a, S_ANG, 10, T*2)
    srd(a, S_WS, 14, OFFS_END)
    srd(a, S_M, 4, E*8)
    srd(a, S_DBG, 92, 256)
    a(f"s_add_u32 s14, s14, {MD_OFF}")
    a("s_addc_u32 s15, s15, 0")
    srd(a, S_MD, 14, E*8)
    a(f"s_mov_b32 s{sC}, s2")
    a(f"s_add_u32 s{sN}, s2, 256")
    a(f"v_mov_b32 v{TMP[2]}, 0")
    a(f"v_lshlrev_b32 v{TMP[3]}, 2, v0")
    a(f"v_add_u32 v{TMP[3]}, {K1_CNT}, v{TMP[3]}")
    a(f"ds_write_b32 v{TMP[3]}, v{TMP[2]}")
    B = SET["B"]
    a("s_cmp_ge_u32 s2, 196" if NP >= 196 else "s_cmp_ge_u32 s2, 0")
    a("s_cbranch_scc1 Lp_nomd")
    a("s_lshl_b32 s3, s2, 15")
    a(f"v_add_u32 v{TMP[4]}, s3, v{vT16}")
    a(f"v_add_u32 v{TMP[5]}, 16384, v{TMP[4]}")
    a(f"buffer_load_dwordx4 {vr(B['o'],4)}, v{TMP[4]}, {sr(S_M,4)}, 0 offen")
    a(f"buffer_load_dwordx4 {vr(B['o']+4,4)}, v{TMP[5]}, {sr(S_M,4)}, 0 offen")
    load_idx(SET["A"], sC)
    load_ang(sC)
    a("s_waitcnt lgkmcnt(0)")
    for k in range(4):
        for h in range(2):
            a(f"s_lshl_b32 s{48+k*4+2*h}, s{40+k*2+h}, 16")
            a(f"s_and_b32 s{48+k*4+2*h+1}, s{40+k*2+h}, 0xffff0000")
    a("s_waitcnt vmcnt(21)")
    for q in range(4):
        r0 = B['o'] + 2*q
        mm = [B['i'] + k for k in range(4)]
        a(f"v_lshlrev_b32 v{mm[0]}, 16, v{r0}")
        a(f"v_and_b32 v{mm[1]}, 0xffff0000, v{r0}")
        a(f"v_lshlrev_b32 v{mm[2]}, 16, v{r0+1}")
        a(f"v_and_b32 v{mm[3]}, 0xffff0000, v{r0+1}")
        acc = [B['i'] + 4 + d for d in range(4)]
        for d in range(4):
            a(f"v_mul_f32 v{acc[d]}, s{48+d}, v{mm[0]}")
        for k in range(1, 4):
            for d in range(4):
                a(f"v_fmac_f32 v{acc[d]}, s{48+k*4+d}, v{mm[k]}")
        o = B['o'] + 8 + 2*q
        a(f"v_cvt_pk_bf16_f32 v{o}, v{acc[0]}, v{acc[1]}")
        a(f"v_cvt_pk_bf16_f32 v{o+1}, v{acc[2]}, v{acc[3]}")
    a(f"buffer_store_dwordx4 {vr(B['o']+8,4)}, v{TMP[4]}, {sr(S_MD,4)}, 0 offen")
    a(f"buffer_store_dwordx4 {vr(B['o']+12,4)}, v{TMP[5]}, {sr(S_MD,4)}, 0 offen")
    a("s_waitcnt vmcnt(2)")
    a("s_branch Lp_start")
    a.lab("Lp_nomd")
    load_idx(SET["A"], sC)
    load_ang(sC)
    a("s_waitcnt vmcnt(0)")
    a.lab("Lp_start")
    a("s_waitcnt lgkmcnt(0)")
    a("s_barrier")
    stamp(a, opt, 76, 80, 67, 1, 126)

    def body(X, Y, n):
        a.lab(f"Lp_body{n}")
        if not DYN: a(f"s_add_u32 s{sN}, s{sC}, {NP}")
        a(f"s_cmp_lt_u32 s{sN}, {NCH}")
        a(f"s_cbranch_scc0 Lp_noy{n}")
        if DYN:
            a(f"s_cmp_lg_u32 s{sWAVE}, 0")
            a(f"s_cbranch_scc1 Lp_notk{n}")
            a("s_mov_b64 exec, 1")
            a(f"v_mov_b32 v{vA}, 1")
            a(f"v_mov_b32 v{TMP[0]}, 192")
            a(f"buffer_atomic_add v{vA}, v{TMP[0]}, {sr(S_DBG,4)}, 0 offen sc0")
            a("s_mov_b64 exec, -1")
            a.lab(f"Lp_notk{n}")
        load_idx(Y, sN)
        a("s_waitcnt vmcnt(30)")
        a(f"s_branch Lp_aftery{n}")
        a.lab(f"Lp_noy{n}")
        a("s_waitcnt vmcnt(16)")
        a.lab(f"Lp_aftery{n}")
        for r in range(25):
            o, i = oreg(X, r), ireg(X, r)
            tb, te, th = TMP[(3*r) % 9], TMP[(3*r+1) % 9], TMP[(3*r+2) % 9]
            a(f"v_mul_hi_u32_u24 v{tb}, s{sMAGB}, v{o}")
            a(f"v_mul_hi_u32_u24 v{th}, s{sMAGH}, v{i}")
            a(f"v_mad_i32_i24 v{te}, v{tb}, s{sNEG}, v{o}")
            a(f"v_lshl_add_u32 v{tb}, v{th}, 8, v{tb}")
            a(f"v_lshl_or_b32 v{i}, v{te}, 20, v{i}")
            a(f"v_lshl_add_u32 v{o}, v{tb}, 2, s{sCNT}")
            a(f"ds_add_u32 v{o}, v{vFOUR}")
        a("s_waitcnt lgkmcnt(0)")
        a("s_barrier")
        a(f"s_cmp_lg_u32 s{sWAVE}, 0")
        a(f"s_cbranch_scc1 Lp_noscan{n}")
        if DYN:
            a(f"s_cmp_lt_u32 s{sN}, {NCH}")
            a(f"s_cbranch_scc0 Lp_notk2{n}")
            a("s_waitcnt vmcnt(14)")
            a(f"v_mov_b32 v{TMP[0]}, {K1_TK}")
            a("s_mov_b64 exec, 1")
            a(f"ds_write_b32 v{TMP[0]}, v{vA}")
            a("s_mov_b64 exec, -1")
            a.lab(f"Lp_notk2{n}")
        c = list(range(120, 128)); vS, vE = 117, 118
        a(f"v_lshlrev_b32 v{vA}, 5, v0")
        a(f"v_add_u32 v{vA}, {K1_CNT}, v{vA}")
        a(f"ds_read_b128 {vr(120,4)}, v{vA}")
        a(f"ds_read_b128 {vr(124,4)}, v{vA} offset:16")
        a("v_mov_b32 v118, 0")
        a("v_mov_b32 v119, 0")
        a("s_waitcnt lgkmcnt(0)")
        for q in range(4):
            a(f"ds_write_b64 v{vA}, v[118:119] offset:{8*q}")
        for k in range(1, 8):
            a(f"v_add_u32 v{c[k]}, v{c[k]}, v{c[k-1]}")
        a(f"v_mov_b32 v{vS}, v{c[7]}")
        for dpp in ("row_shr:1 row_mask:0xf", "row_shr:2 row_mask:0xf", "row_shr:4 row_mask:0xf", "row_shr:8 row_mask:0xf",
                    "row_bcast:15 row_mask:0xa", "row_bcast:31 row_mask:0xc"):
            a("s_nop 1")
            a(f"v_add_u32_dpp v{vS}, v{vS}, v{vS} {dpp} bank_mask:0xf")
        a("s_waitcnt lgkmcnt(0)")
        a(f"v_sub_u32 v{vE}, v{vS}, v{c[7]}")
        for k in range(7, 0, -1):
            a(f"v_add_u32 v{c[k]}, v{vE}, v{c[k-1]}")
        a(f"v_mov_b32 v{c[0]}, v{vE}")
        a(f"ds_write_b128 v{vA}, {vr(120,4)} offset:2048")
        a(f"ds_write_b128 v{vA}, {vr(124,4)} offset:2064")
        a("s_waitcnt lgkmcnt(0)")
        if AOS:
            for r_ in c + [vS]:
                a(f"v_lshrrev_b32 v{r_}, 1, v{r_}")
                a(f"v_mul_u32_u24 v{r_}, 43691, v{r_}")
                a(f"v_lshrrev_b32 v{r_}, 17, v{r_}")
            for k in range(8):
                nxt = c[k+1] if k < 7 else vS
                a(f"v_sub_u32 v{vE}, v{nxt}, v{c[k]}")
                a(f"v_lshl_or_b32 v{c[k]}, v{vE}, 16, v{c[k]}")
        else:
            for k in range(8):
                nxt = c[k+1] if k < 7 else vS
                a(f"v_sub_u32 v{vE}, v{nxt}, v{c[k]}")
                a(f"v_lshrrev_b32 v{c[k]}, 2, v{c[k]}")
                a(f"v_lshl_or_b32 v{c[k]}, v{vE}, 14, v{c[k]}")
        a(f"s_mul_i32 s{sRB}, s{sC}, {OFFS_STRIDE}")
        a(f"s_add_u32 s{sRB}, s{sRB}, {OFFS_OFF}")
        a(f"v_lshl_add_u32 v{vS}, v{vT16}, 1, s{sRB}")
        a(f"buffer_store_dwordx4 {vr(120,4)}, v{vS}, {sr(S_WS,4)}, 0 offen")
        a(f"buffer_store_dwordx4 {vr(124,4)}, v{vS}, {sr(S_WS,4)}, 0 offen offset:16")
        a.lab(f"Lp_noscan{n}")
        a("s_barrier")
        a(f"s_cmp_lt_u32 s{sN}, {NCH}")
        a(f"s_cbranch_scc0 Lp_noy2{n}")
        a("s_waitcnt vmcnt(23)")
        a(f"s_branch Lp_aftery2{n}")
        a.lab(f"Lp_noy2{n}")
        a("s_waitcnt vmcnt(9)")
        a.lab(f"Lp_aftery2{n}")
        for r in range(25):
            o = oreg(X, r)
            a(f"ds_add_rtn_u32 v{o}, v{o}, v{vFOUR} offset:2048")
        a("s_waitcnt lgkmcnt(0)")
        for r in range(25):
            o, i = oreg(X, r), ireg(X, r)
            t = TMP[r % 8]
            off = ""
            if AOS:
                a(f"v_and_b32 v{t}, 2, v{o}")
                a(f"v_sub_u32 v{o}, v{o}, v{t}")
                a(f"v_sub_u32 v{t}, v{o}, v{t}")
                a(f"ds_write_b32 v{o}, v{i}")
                off = " offset:8"
            else:
                a(f"v_lshrrev_b32 v{t}, 1, v{o}")
                a(f"ds_write_b32 v{o}, v{i} offset:{WORD_OFF}")
            if r == 24:
                a(f"ds_write_b16 v{t}, v{ANGT}{off}")
            elif r % 2 == 0:
                a(f"ds_write_b16 v{t}, v{ANG + r//2}{off}")
            else:
                a(f"ds_write_b16_d16_hi v{t}, v{ANG + r//2}{off}")
        a("s_waitcnt lgkmcnt(0)")
        a("s_barrier")
        a(f"s_cmp_lt_u32 s{sN}, {NCH}")
        a(f"s_cbranch_scc0 Lp_noy3{n}")
        load_ang(sN)
        a.lab(f"Lp_noy3{n}")
        bufs = [X["o"] + 4*q for q in range(6)] + [X["i"] + 4*q for q in range(6)]
        v1, v2 = TMP[2], TMP[3]
        a(f"v_add_u32 v{v1}, 65536, v{vT16}")
        a(f"v_add_u32 v{v2}, 131072, v{vT16}")
        def lds_addr(j):
            base = (vT16, v1, v2)[j // 4]
            return f"v{base} offset:{(j % 4) * 16384}"
        def writeout(st, tag):
            for j in range(9):
                a(f"ds_read_b128 {vr(bufs[j],4)}, {lds_addr(j)}")
            a(f"s_mul_i32 s{sB4}, s{sC}, {REC_STRIDE}")
            for j in range(9):
                a(f"s_add_u32 s{sT}, s{sB4}, {j*16384}")
                a(f"s_waitcnt lgkmcnt({8-j})")
                a(f"buffer_store_dwordx4 {vr(bufs[j],4)}, v{vT16}, {sr(S_WS,4)}, s{sT} offen{st}")
            a(f"s_cmp_ge_u32 s{sWAVE}, 6")
            a(f"s_cbranch_scc1 Lp_no10{n}")
            a(f"ds_read_b128 {vr(bufs[9],4)}, {lds_addr(9)}")
            a(f"s_add_u32 s{sT}, s{sB4}, {9*16384}")
            a("s_waitcnt lgkmcnt(0)")
            a(f"buffer_store_dwordx4 {vr(bufs[9],4)}, v{vT16}, {sr(S_WS,4)}, s{sT} offen{st}")
        if opt.get("lastst"):
            a(f"s_cmp_lt_u32 s{sN}, {NCH}")
            a(f"s_cbranch_scc1 Lp_wo{n}")
            writeout(opt["lastst"].replace("_", " "), "l")
            a(f"s_branch Lp_no10{n}")
            a.lab(f"Lp_wo{n}")
        writeout(ST, "")
        a.lab(f"Lp_no10{n}")
        if opt.get("stamp"):
            a(f"s_lshr_b32 s86, s{sC}, 8")
            a("s_add_u32 s86, s86, 2")
            stampv(a, opt, 76, 80, 67, 86, 126)
        a(f"s_mov_b32 s{sC}, s{sN}")
        a(f"s_cmp_lt_u32 s{sC}, {NCH}")
        a("s_cbranch_scc0 Lp_end")
        if DYN:
            a(f"v_mov_b32 v{TMP[0]}, {K1_TK}")
            a(f"ds_read_b32 v{TMP[0]}, v{TMP[0]}")
            a("s_waitcnt lgkmcnt(0)")
            a(f"v_readfirstlane_b32 s{sN}, v{TMP[0]}")
            a("s_nop 3")
            a(f"s_add_u32 s{sN}, s{sN}, 512")
    body(SET["A"], SET["B"], 0)
    body(SET["B"], SET["A"], 1)
    a("s_branch Lp_body0")
    a.lab("Lp_end")
    if opt.get("stamp"):
        a("s_waitcnt vmcnt(0)")
        stamp(a, opt, 76, 80, 67, 6, 126)
        wgrec(a, opt, 76, 80, 67, 1, 126)
        stampmax(a, opt, 76, 80, 7, 126, 67)
    a.lab("Lp_exit")
    a("s_endpgm")
    return a.text()

K2_DESC = 150016
K2_Q = K2_DESC + 8000
K2_LDS = K2_Q + 64
ACC0 = 50000
QB = int(__import__('os').environ.get('QB', 4))

def gen_cons(opt):
    a = A()
    RL = opt.get("k2_ld", "")
    S_WS, S_DIST, S_MD = 4, 8, 8
    vL4, vL2, vD0, vD1, vK1, vK2 = 1, 2, 3, 4, 5, 6
    H = 8
    BURST = bool(opt.get("burst"))
    W = [24, 25, 26, 27]; AN = [28, 29, 30, 31]
    if BURST:
        W = [24, 25, 26, 27, 112, 113, 114, 115]; AN = [28, 29, 30, 31, 116, 117, 118, 119]
    ST = [dict(a8=32, a8b=33, cp=34, md=36, A=40), dict(a8=44, a8b=45, cp=46, md=48, A=52)]
    X = 56
    G = 64
    M = 68
    TT = [72, 73, 74, 75]
    AOS = bool(opt.get("aos"))
    vWO, vAO, vLN4 = 124, 125, 126
    if not AOS: vLN4 = vL4
    P = 76
    a.lab("cons_kernel")
    a("s_cmp_ge_u32 s2, 256")
    a("s_cbranch_scc1 Lc_exit")
    if opt.get("stamp"):
        a("v_readfirstlane_b32 s3, v0")
        a("s_nop 3")
        a("s_lshr_b32 s3, s3, 6")
        stamp_init(a, opt, 40)
        stamp(a, opt, 40, 44, 3, 0, 120)
    if not opt.get("nomap"):
        a("s_and_b32 s4, s2, 7")
        a("s_lshr_b32 s2, s2, 3")
        a("s_lshl_b32 s4, s4, 5")
        a("s_add_u32 s2, s2, s4")
    a("s_load_dwordx4 s[12:15], s[0:1], 24")
    a("s_load_dwordx8 s[16:23], s[0:1], 40")
    a("s_load_dwordx2 s[24:25], s[0:1], 104")
    a("v_and_b32 v7, 63, v0")
    if AOS:
        for (dst_w, dst_a, add) in ((vL4, vL2, 0), (vWO, vAO, 1)):
            a(f"v_add_u32 v{TT[0]}, {add}, v7")
            a(f"v_lshrrev_b32 v{TT[1]}, 1, v{TT[0]}")
            a(f"v_and_b32 v{TT[0]}, 1, v{TT[0]}")
            a(f"v_mul_u32_u24 v{TT[1]}, 12, v{TT[1]}")
            a(f"v_lshl_add_u32 v{dst_w}, v{TT[0]}, 2, v{TT[1]}")
            a(f"v_lshl_add_u32 v{dst_a}, v{TT[0]}, 1, v{TT[1]}")
            a(f"v_add_u32 v{dst_a}, 8, v{dst_a}")
        a(f"v_lshlrev_b32 v{vLN4}, 2, v7")
    else:
        a(f"v_lshlrev_b32 v{vL4}, 2, v7")
        a(f"v_lshlrev_b32 v{vL2}, 1, v7")
    a("v_readfirstlane_b32 s3, v0")
    a("s_waitcnt lgkmcnt(0)")
    a("s_lshr_b32 s3, s3, 6")
    a("s_load_dwordx16 s[28:43], s[22:23], 0")
    a("s_load_dwordx16 s[44:59], s[22:23], 64")
    a("s_load_dwordx4 s[92:95], s[16:17], 0")
    a("s_load_dword s100, s[18:19], 0")
    srd(a, S_WS, 24, OFFS_END)
    srd(a, S_DIST, 12, E*2)
    a("s_load_dwordx16 s[12:27], s[20:21], 0")
    a(f"s_mul_i32 s96, s2, {BE*2}")
    a(f"v_lshlrev_b32 v{P+1}, 1, v0")
    a(f"v_add_u32 v{P+1}, s96, v{P+1}")
    a(f"v_add_u32 v{P}, 4096, v{P+1}")
    DI = P + 4
    for k in range(4):
        a(f"buffer_load_ushort v{DI+k}, v{P+1 if k < 2 else P}, {sr(S_DIST,4)}, 0 offen offset:{2048*(k % 2)}")
    a("s_lshl_b32 s97, s2, 2")
    a(f"s_add_u32 s96, s97, {OFFS_OFF}")
    a(f"v_mul_u32_u24 v{P}, {OFFS_STRIDE}, v0")
    a(f"v_add_u32 v{P}, s96, v{P}")
    a(f"buffer_load_dword v{vD0}, v{P}, {sr(S_WS,4)}, 0 offen")
    a(f"buffer_load_dword v{vD1}, v{P}, {sr(S_WS,4)}, 0 offen offset:1024")
    if opt.get("warm"):
        a(f"s_add_u32 s64, s{S_WS}, {MD_OFF}")
        a(f"s_addc_u32 s65, s{S_WS+1}, 0")
        srd(a, 60, 64, E*8)
        a("s_and_b32 s66, s2, 31")
        a(f"s_mul_i32 s66, s66, {100096}")
        a(f"v_lshlrev_b32 v{P+14}, 4, v0")
        a(f"v_add_u32 v{P+14}, s66, v{P+14}")
        for j in range(6):
            a(f"s_mov_b32 s67, {j*16384}")
            a(f"buffer_load_dwordx4 {vr(24,4)}, v{P+14}, s[60:63], s67 offen")
        a(f"v_cmp_gt_u32 vcc, {(100096-6*16384)//16}, v0")
        a("s_and_saveexec_b64 s[96:97], vcc")
        a("s_cbranch_execz Lc_w")
        a(f"s_mov_b32 s67, {6*16384}")
        a(f"buffer_load_dwordx4 {vr(24,4)}, v{P+14}, s[60:63], s67 offen")
        a.lab("Lc_w")
        a("s_mov_b64 exec, s[96:97]")
    Z = P + 8
    for q in range(4): a(f"v_mov_b32 v{Z+q}, 0")
    a(f"v_lshlrev_b32 v{Z+4}, 4, v0")
    a(f"v_add_u32 v{Z+4}, {ACC0}, v{Z+4}")
    a(f"v_add_u32 v{Z+5}, 65536, v{Z+4}")
    for j in range(6):
        base = Z+4 if j < 4 else Z+5
        a(f"ds_write_b128 v{base}, {vr(Z,4)} offset:{(j % 4)*16384}")
    a(f"v_cmp_gt_u32 vcc, 106, v0")
    a("s_and_saveexec_b64 s[96:97], vcc")
    a("s_cbranch_execz Lc_z")
    a(f"ds_write_b128 v{Z+5}, {vr(Z,4)} offset:{2*16384}")
    a.lab("Lc_z")
    a("s_mov_b64 exec, s[96:97]")
    for q in range(len(AN)): a(f"v_mov_b32 v{AN[q]}, 0")
    a("s_waitcnt lgkmcnt(0)")
    def dw(base, row, d): return base + 2*row + d//2
    for l in range(2):
        for d in range(4):
            for rp in range(4):
                op = "s_pack_ll_b32_b16" if d % 2 == 0 else "s_pack_hh_b32_b16"
                a(f"{op} s{60 + (l*4+d)*4 + rp}, s{dw(28, 4*rp+l, d)}, s{dw(28, 4*rp+2+l, d)}")
    WR = 28
    for d in range(4):
        for rp in range(4):
            op = "s_pack_ll_b32_b16" if d % 2 == 0 else "s_pack_hh_b32_b16"
            a(f"{op} s{WR + d*4 + rp}, s{dw(12, 2*rp, d)}, s{dw(12, 2*rp+1, d)}")
    for r in range(7, -1, -1):
        if r % 2: a(f"s_and_b32 s{92+r}, s{92+r//2}, 0xffff0000")
        else:     a(f"s_lshl_b32 s{92+r}, s{92+r//2}, 16")
    a("s_lshl_b32 s44, s100, 16")
    a("s_and_b32 s45, s100, 0xffff0000")
    a(f"v_mov_b32 v{vK1}, s44")
    a(f"v_mov_b32 v{vK2}, s45")
    a(f"v_mul_f32 v{vK1}, 0.15915494, v{vK1}")
    a(f"v_mul_f32 v{vK2}, 0.15915494, v{vK2}")
    a(f"s_mov_b32 s46, 0xc166d4ca")
    a("s_waitcnt vmcnt(8)" if opt.get("warm") else "s_waitcnt vmcnt(2)")
    RB = P + 16
    RP = P + 24
    AA = P + 28
    for k in range(4):
        if k == 3:
            a("s_cmp_lg_u32 s3, 0")
            a("s_cbranch_scc1 Lc_pro_done")
        a(f"v_lshlrev_b32 v{DI+k}, 16, v{DI+k}")
        for r in range(8):
            a(f"v_subrev_f32 v{RB+r}, s{92+r}, v{DI+k}")
        for r in range(8):
            a(f"v_mul_f32 v{RB+r}, v{RB+r}, v{RB+r}")
        for r in range(8):
            a(f"v_mul_f32 v{RB+r}, s46, v{RB+r}")
        for r in range(8):
            a(f"v_exp_f32 v{RB+r}, v{RB+r}")
        a("s_nop 0")
        for rp in range(4):
            a(f"v_cvt_pk_bf16_f32 v{RP+rp}, v{RB+2*rp}, v{RB+2*rp+1}")
        for j in range(8):
            a(f"v_dot2_f32_bf16 v{AA+j}, v{RP}, s{60+j*4}, 0")
        for d in range(4):
            a(f"v_dot2_f32_bf16 v{H+4*k+d}, v{RP}, s{WR+d*4}, 0")
        for rp in range(1, 4):
            for j in range(8):
                a(f"v_dot2_f32_bf16 v{AA+j}, v{RP+rp}, s{60+j*4+rp}, v{AA+j}")
            for d in range(4):
                a(f"v_dot2_f32_bf16 v{H+4*k+d}, v{RP+rp}, s{WR+d*4+rp}, v{H+4*k+d}")
        for d in range(4):
            a(f"v_cvt_pk_bf16_f32 v{RB+d}, v{AA+d}, v{AA+4+d}")
        a(f"v_lshlrev_b32 v{RP}, 4, v0")
        if k < 3:
            a(f"ds_write_b128 v{RP}, {vr(RB,4)} offset:{16384*k}")
        else:
            a(f"v_cmp_gt_u32 vcc, {BE-3072}, v0")
            a("s_and_saveexec_b64 s[12:13], vcc")
            a(f"ds_write_b128 v{RP}, {vr(RB,4)} offset:{16384*k}")
            a("s_mov_b64 exec, s[12:13]")
    a.lab("Lc_pro_done")
    s0, s1, s2 = TT[0], TT[1], TT[2]
    a(f"v_lshlrev_b32 v{s0}, 2, v0")
    a(f"v_add_u32 v{s0}, {K2_DESC}, v{s0}")
    a(f"v_mov_b32 v{s1}, 0")
    a(f"v_mov_b32 v{s2}, {K2_Q}")
    a(f"v_cmp_gt_u32 vcc, {NCH}, v0")
    a("s_and_saveexec_b64 s[12:13], vcc")
    a("s_waitcnt vmcnt(6)" if opt.get("warm") else "s_waitcnt vmcnt(0)")
    a(f"ds_write_b32 v{s0}, v{vD0}")
    a(f"ds_write_b32 v{s0}, v{vD1} offset:{4*NCH}")
    a(f"ds_write_b32 v{s2}, v{s1}")
    a("s_mov_b64 exec, s[12:13]")
    a(f"s_add_u32 s24, s{S_WS}, {MD_OFF}")
    a(f"s_addc_u32 s25, s{S_WS+1}, 0")
    if opt.get("offen"): srd(a, S_MD, 24, E*8)
    else: srd(a, S_MD, 24, E, stride=8)
    a("s_waitcnt lgkmcnt(0)")
    a("s_barrier")
    stamp_init(a, opt, 40)
    stamp(a, opt, 40, 44, 3, 1, 120)

    MM = [12, 14, 16, 18]; MA = [20, 22, 24, 26]
    if BURST:
        MM = [12, 14, 16, 18, 60, 62, 64, 66]; MA = [20, 22, 24, 26, 68, 70, 72, 74]
    sI, sREM, sCB, sOW, sOA, sD, sNN, sPH, sTAIL, sCB0, sT = 28, 29, 30, 31, 32, 33, 34, 35, 36, 37, 38
    for s in (sREM, sTAIL, 54, 55, 56, 57): a(f"s_mov_b32 s{s}, 0")
    a(f"s_mov_b32 s{sI}, {QB}")
    vQ, vONE, vDA = 7, vD1, TT[3]
    a(f"v_mov_b32 v{vQ}, {K2_Q}")
    a(f"v_mov_b32 v{vONE}, {QB}")
    uid = [0]
    def Lst(k):
        u = uid[0]; uid[0] += 1
        mm, ma = MM[k], MA[k]
        a(f"s_cmp_lg_u32 s{sREM}, 0")
        a(f"s_cbranch_scc1 Lh{u}")
        a.lab(f"Ln{u}")
        a(f"s_cmp_lt_u32 s{sI}, {QB}")
        a(f"s_cbranch_scc1 Lr{u}")
        a(f"s_cmp_lg_u32 s{sTAIL}, 0")
        a(f"s_cbranch_scc1 Lx{u}")
        a("s_mov_b64 exec, 1")
        a(f"ds_add_rtn_u32 v{vD0}, v{vQ}, v{vONE}")
        a("s_waitcnt lgkmcnt(0)")
        a(f"v_readfirstlane_b32 s{sPH}, v{vD0}")
        a(f"s_mov_b64 exec, {(1 << QB) - 1}")
        a(f"s_cmp_ge_u32 s{sPH}, {2*NCH}")
        a(f"s_cbranch_scc1 Lx{u}")
        a(f"s_lshl_b32 s{sT}, s{sPH}, 2")
        a(f"s_add_u32 s{sT}, s{sT}, {K2_DESC}")
        a(f"v_add_u32 v{vDA}, s{sT}, v{vLN4}")
        a(f"ds_read_b32 v{vD0}, v{vDA}")
        a(f"s_sub_u32 s{sT}, s{sPH}, {NCH}")
        a(f"s_cmp_ge_u32 s{sPH}, {NCH}")
        a(f"s_cselect_b32 s{sT}, s{sT}, s{sPH}")
        a(f"s_mul_i32 s{sCB}, s{sT}, {REC_STRIDE}")
        if opt.get("samechunk"): a(f"s_and_b32 s{sCB}, s{sT}, 7\ns_mul_i32 s{sCB}, s{sCB}, {REC_STRIDE}")
        a(f"s_mov_b32 s{sI}, 0")
        a("s_waitcnt lgkmcnt(0)")
        a.lab(f"Lr{u}")
        a(f"v_readlane_b32 s{sD}, v{vD0}, s{sI}")
        a(f"s_add_u32 s{sI}, s{sI}, 1")
        if AOS:
            a(f"s_lshr_b32 s{sREM}, s{sD}, 16")
            a(f"s_and_b32 s{sOA}, s{sD}, 1")
            a(f"s_bfe_u32 s{sT}, s{sD}, 0xf0001")
            a(f"s_mul_i32 s{sT}, s{sT}, 12")
            a(f"s_add_u32 s{sOW}, s{sCB}, s{sT}")
        else:
            a(f"s_add_u32 s{sOW}, s{sCB}, {WORD_OFF}")
            a(f"s_lshr_b32 s{sREM}, s{sD}, 16")
            a(f"s_and_b32 s{sD}, s{sD}, 0xffff")
            a(f"s_lshl_b32 s{sT}, s{sD}, 1")
            a(f"s_add_u32 s{sOA}, s{sCB}, s{sT}")
            a(f"s_lshl_b32 s{sT}, s{sD}, 2")
            a(f"s_add_u32 s{sOW}, s{sOW}, s{sT}")
        a(f"s_add_u32 s{sCB}, s{sCB}, {REC_STRIDE}")
        if opt.get("spf"):
            a(f"s_cmp_ge_u32 s{sI}, {QB}")
            a(f"s_cbranch_scc1 Lnp{u}")
            a(f"v_readlane_b32 s50, v{vD0}, s{sI}")
            a(f"s_add_u32 s51, s{sCB}, {WORD_OFF}")
            a("s_lshr_b32 s52, s50, 16")
            a("s_and_b32 s50, s50, 0xffff")
            a("s_lshl_b32 s53, s50, 2")
            a("s_add_u32 s54, s51, s53")
            a("s_lshl_b32 s53, s52, 2")
            a("s_add_u32 s55, s54, s53")
            a("s_sub_u32 s55, s55, 4")
            a("s_lshl_b32 s53, s50, 1")
            a(f"s_add_u32 s56, s{sCB}, s53")
            a("s_lshl_b32 s53, s52, 1")
            a("s_add_u32 s57, s56, s53")
            a("s_sub_u32 s57, s57, 2")
            a.lab(f"Lnp{u}")
        a(f"s_cmp_eq_u32 s{sREM}, 0")
        a(f"s_cbranch_scc1 Ln{u}")
        a.lab(f"Lh{u}")
        a(f"s_min_u32 s{sNN}, s{sREM}, 64")
        a(f"s_sub_u32 s{sREM}, s{sREM}, s{sNN}")
        a(f"s_bfm_b64 {sr(mm,2)}, s{sNN}, 0")
        a(f"s_cmp_eq_u32 s{sNN}, 64")
        a(f"s_cselect_b64 {sr(mm,2)}, -1, {sr(mm,2)}")
        a(f"s_mov_b64 {sr(ma,2)}, {sr(mm,2)}")
        a(f"s_mov_b64 exec, {sr(mm,2)}")
        if AOS:
            a(f"s_cmp_lg_u32 s{sOA}, 0")
            a(f"s_cbranch_scc1 Lo{u}")
            a(f"buffer_load_dword v{W[k]}, v{vL4}, {sr(S_WS,4)}, s{sOW} offen{RL}")
            a(f"buffer_load_short_d16_hi v{AN[k]}, v{vL2}, {sr(S_WS,4)}, s{sOW} offen{RL}")
            a(f"s_add_u32 s{sOW}, s{sOW}, 384")
            a(f"s_branch Ld{u}")
            a.lab(f"Lo{u}")
            a(f"buffer_load_dword v{W[k]}, v{vWO}, {sr(S_WS,4)}, s{sOW} offen{RL}")
            a(f"buffer_load_short_d16_hi v{AN[k]}, v{vAO}, {sr(S_WS,4)}, s{sOW} offen{RL}")
            a(f"s_add_u32 s{sOW}, s{sOW}, 384")
            a(f"s_branch Ld{u}")
        else:
            a(f"buffer_load_dword v{W[k]}, v{vL4}, {sr(S_WS,4)}, s{sOW} offen{RL}")
            a(f"buffer_load_short_d16_hi v{AN[k]}, v{vL2}, {sr(S_WS,4)}, s{sOA} offen{RL}")
            a(f"s_add_u32 s{sOW}, s{sOW}, 256")
            a(f"s_add_u32 s{sOA}, s{sOA}, 128")
            a(f"s_branch Ld{u}")
        a.lab(f"Lx{u}")
        a(f"s_add_u32 s{sTAIL}, s{sTAIL}, 1")
        a(f"s_mov_b64 {sr(mm,2)}, 1")
        a(f"s_mov_b64 {sr(ma,2)}, 0")
        a("s_mov_b64 exec, 1")
        a(f"s_mov_b32 s{sT}, {0 if AOS else WORD_OFF}")
        a(f"buffer_load_dword v{W[k]}, v{vL4}, {sr(S_WS,4)}, s{sT} offen{RL}")
        a(f"buffer_load_short_d16_hi v{AN[k]}, v{vL2}, {sr(S_WS,4)}, 0 offen{RL}")
        a.lab(f"Ld{u}")
    def Gst(k, wait):
        st = ST[k % 2]; w = W[k]; an = AN[k]
        if wait is not None: a(f"s_waitcnt vmcnt({wait})")
        a(f"s_mov_b64 exec, {sr(MM[k],2)}")
        a(f"v_and_b32 v{TT[0]}, {opt.get('gmask','0xfffff')}, v{w}")
        a(f"v_lshrrev_b32 v{st['a8']}, 17, v{w}")
        if opt.get("gscale"):
            a(f"v_mov_b32 v{TT[3]}, {int(opt['gscale'])*2**32//800000}")
            a(f"v_mul_hi_u32 v{TT[0]}, v{TT[0]}, v{TT[3]}")
        if opt.get("nogather"): a(f"v_mov_b32 v{TT[0]}, 0")
        if opt.get("offen"):
            a(f"v_lshlrev_b32 v{TT[0]}, 3, v{TT[0]}")
            a(f"buffer_load_dwordx2 {vr(st['md'],2)}, v{TT[0]}, {sr(S_MD,4)}, 0 offen{opt.get('k2_g_ld','')}")
        else:
            a(f"buffer_load_dwordx2 {vr(st['md'],2)}, v{TT[0]}, {sr(S_MD,4)}, 0 idxen{opt.get('k2_g_ld','')}")
        a(f"v_and_b32 v{st['a8']}, 0x7ff8, v{st['a8']}")
        a(f"v_mul_f32 v{TT[1]}, v{vK1}, v{an}")
        a(f"v_add_u32 v{TT[0]}, v{st['a8']}, v{st['a8']}")
        a(f"v_mul_f32 v{TT[2]}, v{vK2}, v{an}")
        a(f"ds_read_b128 {vr(st['A'],4)}, v{TT[0]}")
        a(f"v_fract_f32 v{TT[1]}, v{TT[1]}")
        a(f"v_fract_f32 v{TT[2]}, v{TT[2]}")
        a(f"v_cos_f32 v{TT[1]}, v{TT[1]}")
        a(f"v_cos_f32 v{TT[2]}, v{TT[2]}")
        a(f"v_add_u32 v{st['a8b']}, {ACC0 + 25000}, v{st['a8']}")
        a(f"v_cvt_pk_bf16_f32 v{st['cp']}, v{TT[1]}, v{TT[2]}")
    def Cst(k, vm=5):
        st = ST[k % 2]
        a(f"s_waitcnt vmcnt({vm}) lgkmcnt(5)")
        if opt.get("spf"):
            a(f"s_buffer_load_dword s100, {sr(S_WS,4)}, s54")
            a(f"s_buffer_load_dword s100, {sr(S_WS,4)}, s54 offset:0x80")
            a(f"s_buffer_load_dword s100, {sr(S_WS,4)}, s55")
            a(f"s_buffer_load_dword s100, {sr(S_WS,4)}, s56")
            a(f"s_buffer_load_dword s100, {sr(S_WS,4)}, s57")
        a(f"s_mov_b64 exec, {sr(MA[k],2)}")
        md = st['md']
        for d in range(4):
            a(f"v_dot2_f32_bf16 v{G+d}, v{st['A']+d}, v{st['cp']}, 0")
        a(f"v_lshlrev_b32 v{M}, 16, v{md}")
        a(f"v_and_b32 v{M+1}, 0xffff0000, v{md}")
        a(f"v_lshlrev_b32 v{M+2}, 16, v{md+1}")
        a(f"v_and_b32 v{M+3}, 0xffff0000, v{md+1}")
        for d in range(4):
            a(f"v_mul_f32 v{G+d}, v{M+d}, v{G+d}")
        for d in range(4):
            a(f"v_cvt_f64_f32 {vr(X+2*d,2)}, v{G+d}")
        if opt.get("noatom"):
            for q in range(4): a(f"ds_read_b32 v{X+q}, v{vL4}")
            return
        a(f"ds_add_f64 v{st['a8']}, {vr(X,2)} offset:{ACC0}")
        a(f"ds_add_f64 v{st['a8b']}, {vr(X+2,2)}")
        a(f"ds_add_f64 v{st['a8b']}, {vr(X+4,2)} offset:25000")
        a(f"ds_add_f64 v{st['a8b']}, {vr(X+6,2)} offset:50000")
    if not BURST:
        Lst(0); Lst(1)
        Gst(0, 2)
        Lst(2)
        a("s_waitcnt lgkmcnt(0)")
        a.lab("Lc_loop")
        for j in range(4):
            Gst((j+1) % 4, 3)
            Lst((j+3) % 4)
            Cst(j)
            a(f"s_cmp_ge_u32 s{sTAIL}, 3")
            if j < 3: a("s_cbranch_scc1 Lc_done")
            else:     a("s_cbranch_scc0 Lc_loop")
    else:
        for k in range(4): Lst(k)
        Gst(0, 0)
        a("s_waitcnt lgkmcnt(0)")
        a.lab("Lc_loop")
        for j in range(8):
            Gst((j+1) % 8, None)
            if j % 4 == 0:
                for k in range(4): Lst((j+4+k) % 8)
            Cst(j, 9 if j % 4 < 2 else 1)
            a(f"s_cmp_eq_u64 {sr(MA[(j+1) % 8],2)}, 0")
            if j < 7: a("s_cbranch_scc1 Lc_done")
            else:     a("s_cbranch_scc0 Lc_loop")
    a.lab("Lc_done")
    a("s_mov_b64 exec, -1")
    stamp(a, opt, 40, 44, 3, 3, 120)
    S_M, S_O = 12, 16
    a("s_load_dwordx2 s[20:21], s[0:1], 0")
    a("s_load_dwordx4 s[24:27], s[0:1], 80")
    a("s_waitcnt vmcnt(0) lgkmcnt(0)")
    a("s_load_dwordx8 s[28:35], s[24:25], 0")
    srd(a, S_M, 20, E*8)
    srd(a, S_O, 26, E*8)
    a(f"s_mul_i32 s20, s2, {BE*8}")
    a(f"v_lshlrev_b32 v{P}, 3, v0")
    a(f"v_add_u32 v{P+1}, s20, v{P}")
    MV = P + 2
    for k in range(4):
        a(f"v_add_u32 v{P+10+k}, {8192*k}, v{P+1}")
        a(f"buffer_load_dwordx2 {vr(MV+2*k,2)}, v{P+10+k}, {sr(S_M,4)}, 0 offen")
    a("s_waitcnt lgkmcnt(0)")
    for k in range(4):
        for h in range(2):
            a(f"s_lshl_b32 s{36+k*4+2*h}, s{28+k*2+h}, 16")
            a(f"s_and_b32 s{36+k*4+2*h+1}, s{28+k*2+h}, 0xffff0000")
    a("s_barrier")
    stamp_init(a, opt, 52)
    stamp(a, opt, 52, 56, 3, 4, 120)
    AC = P + 16
    AG = P + 24
    U = P + 28
    MF = P + 32
    for k in range(4):
        if k == 3:
            a("s_cmp_lg_u32 s3, 0")
            a("s_cbranch_scc1 Lc_end")
            a(f"v_cmp_gt_u32 vcc, {BE-3072}, v0")
            a("s_and_saveexec_b64 s[22:23], vcc")
        a(f"v_add_u32 v{P+14}, {ACC0 + 8192*k}, v{P}")
        a(f"v_add_u32 v{P+15}, 50000, v{P+14}")
        a(f"ds_read_b64 {vr(AC,2)}, v{P+14}")
        a(f"ds_read_b64 {vr(AC+2,2)}, v{P+14} offset:25000")
        a(f"ds_read_b64 {vr(AC+4,2)}, v{P+15}")
        a(f"ds_read_b64 {vr(AC+6,2)}, v{P+15} offset:25000")
        a("s_waitcnt lgkmcnt(0)")
        for d in range(4):
            a(f"v_cvt_f32_f64 v{AG+d}, {vr(AC+2*d,2)}")
        for d in range(4):
            a(f"v_mul_f32 v{U+d}, s{36+d}, v{AG}")
        for kk in range(1, 4):
            for d in range(4):
                a(f"v_fmac_f32 v{U+d}, s{36+kk*4+d}, v{AG+kk}")
        a("s_waitcnt vmcnt(3)")
        mv = MV + 2*k
        a(f"v_lshlrev_b32 v{MF}, 16, v{mv}")
        a(f"v_and_b32 v{MF+1}, 0xffff0000, v{mv}")
        a(f"v_lshlrev_b32 v{MF+2}, 16, v{mv+1}")
        a(f"v_and_b32 v{MF+3}, 0xffff0000, v{mv+1}")
        for d in range(4):
            a(f"v_fmac_f32 v{MF+d}, v{U+d}, v{H+4*k+d}")
        a(f"v_cvt_pk_bf16_f32 v{U}, v{MF}, v{MF+1}")
        a(f"v_cvt_pk_bf16_f32 v{U+1}, v{MF+2}, v{MF+3}")
        a(f"buffer_store_dwordx2 {vr(U,2)}, v{P+10+k}, {sr(S_O,4)}, 0 offen")
    a.lab("Lc_end")
    stamp_init(a, opt, 52)
    stamp(a, opt, 52, 56, 3, 5, 120)
    stampmax(a, opt, 52, 56, 7, 120, 3)
    a.lab("Lc_exit")
    a("s_endpgm")
    return a.text()

HEADER = """; GemNet triplet aggregation: two launches.
; @launch kernel=prod_kernel grid=(256,1,1) block=(1024,1,1) lds={l1}
; @launch kernel=cons_kernel grid=(256,1,1) block=(1024,1,1) lds={l2}
.amdgcn_target "amdgcn-amd-amdhsa--gfx950"
.text
"""
def kd(name, vg, sg):
    return f""".p2align 6
.amdhsa_kernel {name}
  .amdhsa_next_free_vgpr {vg}
  .amdhsa_next_free_sgpr {sg}
  .amdhsa_accum_offset {vg}
  .amdhsa_group_segment_fixed_size 0
  .amdhsa_kernarg_size 112
  .amdhsa_user_sgpr_count 2
  .amdhsa_user_sgpr_kernarg_segment_ptr 1
  .amdhsa_system_sgpr_workgroup_id_x 1
  .amdhsa_float_denorm_mode_32 3
.end_amdhsa_kernel
"""
def build(opt):
    s = HEADER.format(l1=K1_LDS, l2=K2_LDS)
    for name, body in (("prod_kernel", gen_prod(opt)), ("cons_kernel", gen_cons(opt))):
        s += f".globl {name}\n.p2align 8\n.type {name},@function\n{body}\n"
    s += '.section .rodata,"a"\n' + kd("prod_kernel", 128, 102) + kd("cons_kernel", 128, 102)
    return s

if __name__ == "__main__":
    opt = {}
    out = sys.argv[1]
    for kv in sys.argv[2:]:
        k, v = kv.split("=", 1); opt[k] = v.replace("_", " ") if k.endswith(("_ld", "_st")) else v
    open(out, "w").write(build(opt))
```
